```python
import torch

def _softmax(x, axis=-1):
    return torch.softmax(x, dim=axis)

def _gelu(x):
    return torch.nn.functional.gelu(x, approximate='tanh')

def _silu(x):
    return torch.nn.functional.silu(x)

def _sigmoid(x):
    return torch.sigmoid(x)

def _layernorm(x, axis=-1, eps=1e-05):
    m = x.mean(dim=axis, keepdim=True)
    v = x.var(dim=axis, keepdim=True, unbiased=False)
    return (x - m) / torch.sqrt(v + eps)

def _scatter_add(tgt, idx, src, axis=0):
    return tgt.clone().index_add_(axis, idx, src)

def _segment_sum(src, seg, n):
    out = torch.zeros((n,) + src.shape[1:], dtype=src.dtype)
    return out.index_add_(0, seg, src)

def _pad(x, pw):
    flat = tuple((v for pair in reversed(pw) for v in pair))
    return torch.nn.functional.pad(x, flat)
kernel_name = 'adaLN_cond__memory_aug_recurrent_mem_tr__mixer_token_mlp__prompt'

def setup_inputs():

    _w = lambda a: (lambda t: t.to(torch.bfloat16) if t.is_floating_point() else t)(torch.as_tensor(a))

    def _A_setup():
        B, S, Dm = (1, 2048, 640)
        H, Dh = (32, 128)
        M, seg = (8, 32)
        seg = min(seg, S)
        S = S // seg * seg
        return {'x': _w((lambda *s: torch.randn(*s, dtype=torch.bfloat16) * 0.05)(B, S, Dm)), 'mem0': _w((lambda *s: torch.randn(*s, dtype=torch.bfloat16) * 0.8)(B, M, Dm)), 'Wq': _w((lambda *s: torch.randn(*s, dtype=torch.bfloat16) * 1.6)(Dm, H, Dh) * Dm ** (-0.5)), 'Wk': _w((lambda *s: torch.randn(*s, dtype=torch.bfloat16) * 1.6)(Dm, H, Dh) * Dm ** (-0.5)), 'Wv': _w((lambda *s: torch.randn(*s, dtype=torch.bfloat16) * 0.8)(Dm, H, Dh) * Dm ** (-0.5)), 'Wo': _w((lambda *s: torch.randn(*s, dtype=torch.bfloat16) * 0.8)(H, Dh, Dm) * (H * Dh) ** (-0.5)), 'seg_len': seg}
    _A_in = _A_setup()

    def _B_setup():
        B, S, D, F = (1, 2048, 640, 1728)
        return {'x': _w((lambda *s: torch.randn(*s, dtype=torch.bfloat16) * 0.05)(B, S, D)), 'w1': _w((lambda *s: torch.randn(*s, dtype=torch.bfloat16) * 1.6)(S, F) * S ** (-0.5)), 'b1': _w((lambda *s: torch.randn(*s, dtype=torch.bfloat16) * 1.6)(F) * 0.02), 'w2': _w((lambda *s: torch.randn(*s, dtype=torch.bfloat16) * 0.2)(F, S) * F ** (-0.5)), 'b2': _w((lambda *s: torch.randn(*s, dtype=torch.bfloat16) * 0.2)(S) * 0.02)}
    _B_in = _B_setup()
    return {'A_x': _A_in['x'], 'A_mem0': _A_in['mem0'], 'A_Wq': _A_in['Wq'], 'A_Wk': _A_in['Wk'], 'A_Wv': _A_in['Wv'], 'A_Wo': _A_in['Wo'], 'A_seg_len': _A_in['seg_len'], 'B_x': _B_in['x'], 'B_w1': _B_in['w1'], 'B_b1': _B_in['b1'], 'B_w2': _B_in['w2'], 'B_b2': _B_in['b2'], 'c': _w((lambda *s: torch.randn(*s, dtype=torch.bfloat16) * 0.05)(1, 640) * 8.0), 'w_mod': _w((lambda *s: torch.randn(*s, dtype=torch.bfloat16) * 0.05)(640, 6 * 640) * 640 ** (-0.5) * 8.0)}

def reference(A_x, A_mem0, A_Wq, A_Wk, A_Wv, A_Wo, A_seg_len, B_x, B_w1, B_b1, B_w2, B_b2, c, w_mod):

    def _A_ref(x, mem0, Wq, Wk, Wv, Wo, seg_len):
        B, S, Dm = x.shape
        H, Dh = (Wq.shape[1], Wq.shape[2])
        M = mem0.shape[1]
        scale = Dh ** (-0.5)
        n_seg = S // seg_len
        L = M + seg_len
        idx = torch.arange(L)
        mask = (idx[:, None] < M) | (idx[:, None] >= idx[None, :])
        mem = mem0
        outs = []
        for s in range(n_seg):
            xs = x[:, s * seg_len:(s + 1) * seg_len, :].clone()
            h = torch.concatenate([mem, xs], axis=1)
            q = torch.einsum('btd,dhe->bhte', h, Wq)
            k = torch.einsum('btd,dhe->bhte', h, Wk)
            v = torch.einsum('btd,dhe->bhte', h, Wv)
            scores = torch.einsum('bhqe,bhke->bhqk', q, k) * scale
            scores = torch.where(mask[None, None], scores, -1000000000.0)
            p = _softmax(scores, axis=-1)
            o = torch.einsum('bhqk,bhke->bhqe', p, v)
            o = torch.einsum('bhte,hed->btd', o, Wo)
            mem = o[:, :M, :].clone()
            outs.append(o[:, M:, :])
        return torch.concatenate(outs, axis=1)

    def _B_ref(x, w1, b1, w2, b2):
        B, S, D = x.shape
        h = _layernorm(x, axis=-1)
        u = torch.einsum('bsd,sf->bdf', h, w1) + b1
        u = _gelu(u)
        y = torch.einsum('bdf,fs->bds', u, w2) + b2
        return (lambda x, *d: x.permute(*d))(y, 0, 2, 1)
    x = A_x
    mod = (_silu(c) @ w_mod).reshape(c.shape[0], 6, 1, -1)
    sa, ca, ga, sb, cb, gb = (mod[:, 0].clone(), mod[:, 1].clone(), mod[:, 2].clone(), mod[:, 3].clone(), mod[:, 4].clone(), mod[:, 5].clone())
    h = _layernorm(x, axis=-1) * (1 + ca) + sa
    x = x + ga * _A_ref(h, A_mem0, A_Wq, A_Wk, A_Wv, A_Wo, A_seg_len)
    h = _layernorm(x, axis=-1) * (1 + cb) + sb
    x = x + gb * _B_ref(h, B_w1, B_b1, B_w2, B_b2)
    return x
```

```python
import re

def v(i): return "v%d" % i
def a(i): return "a%d" % i
def s(i): return "s%d" % i
def vr(i, n): return "v%d" % i if n == 1 else "v[%d:%d]" % (i, i + n - 1)
def ar(i, n): return "a%d" % i if n == 1 else "a[%d:%d]" % (i, i + n - 1)
def sr(i, n): return "s%d" % i if n == 1 else "s[%d:%d]" % (i, i + n - 1)
def ur(i, n):
    return vr(i, n) if i < 256 else ar(i - 256, n)

_REG = re.compile(r"^(-|\|)?(abs\()?([vas])(?:(\d+)|\[(\d+):(\d+)\])\)?\|?$")
TRANS = ("v_exp_f32", "v_log_f32", "v_rcp_f32", "v_rsq_f32", "v_sqrt_f32", "v_sin_f32", "v_cos_f32", "v_rcp_iflag_f32")

def regs_of(op):
    op = op.strip()
    if op in ("vcc", "vcc_lo", "vcc_hi"): return {("x", "vcc")}
    if op in ("exec", "exec_lo", "exec_hi"): return {("x", "exec")}
    if op == "m0": return {("x", "m0")}
    m = _REG.match(op)
    if not m: return set()
    k = m.group(3)
    if m.group(4) is not None: return {(k, int(m.group(4)))}
    return {(k, i) for i in range(int(m.group(5)), int(m.group(6)) + 1)}

def split_ops(rest):
    out, depth, cur = [], 0, ""
    for ch in rest:
        if ch in "[(": depth += 1
        if ch in "])": depth -= 1
        if ch == "," and depth == 0:
            out.append(cur.strip()); cur = ""
        else:
            cur += ch
    if cur.strip(): out.append(cur.strip())
    return out

class Ins:
    __slots__ = ("text", "mn", "kind", "dst", "src", "passes", "ab", "c", "trans", "dpp", "perm", "wide_store", "lds_dma", "nslots",
                 "sdst", "readlane", "cexact")
    def __init__(self, text):
        self.text = text
        t = text.split(";")[0].strip()
        parts = t.split(None, 1)
        self.mn = mn = parts[0]
        rest = parts[1] if len(parts) > 1 else ""
        ops = split_ops(rest)
        mods = ""
        if ops:
            last = ops[-1].split()
            if len(last) > 1:
                ops[-1] = last[0]; mods = " ".join(last[1:])
        self.dst, self.src, self.ab, self.c = set(), set(), set(), set()
        self.passes = 0; self.trans = False; self.dpp = False; self.perm = False
        self.wide_store = False; self.lds_dma = False; self.nslots = 1; self.sdst = set(); self.readlane = False
        self.cexact = None
        R = [regs_of(o) for o in ops]
        if mn.startswith("v_mfma") or mn.startswith("v_smfmac"):
            self.kind = "mfma"
            self.passes = 8 if "32x32" in mn else 4
            self.dst = R[0]; self.ab = R[1] | R[2]
            if mn.startswith("v_smfmac"):
                self.ab |= R[3]; self.c = R[0]; self.cexact = ops[0]
            else:
                self.c = R[3]; self.cexact = ops[3]
            self.src = self.ab | self.c
        elif mn.startswith("v_"):
            self.kind = "valu"
            base = mn.replace("_e32", "").replace("_e64", "").replace("_dpp", "").replace("_sdwa", "")
            self.trans = base in TRANS
            self.dpp = ("row_" in mods) or ("quad_perm" in mods) or ("wave_" in mods) or ("_dpp" in mn)
            if base.startswith("v_permlane") and "swap" in base:
                self.perm = True; self.dst = R[0] | R[1]; self.src = R[0] | R[1]
            elif base.startswith("v_cmp"):
                self.dst = R[0]; self.src = set().union(*R[1:])
                if base.startswith("v_cmpx"): self.dst = self.dst | {("x", "exec")}
            elif base in ("v_readfirstlane_b32", "v_readlane_b32"):
                self.dst = R[0]; self.src = set().union(*R[1:]); self.readlane = True
            elif base in ("v_add_co_u32", "v_sub_co_u32", "v_addc_co_u32", "v_subb_co_u32"):
                self.dst = R[0] | R[1]; self.src = set().union(*R[2:])
            else:
                self.dst = R[0] if R else set()
                self.src = set().union(*R[1:]) if len(R) > 1 else set()
                if base.startswith("v_fmac") or base.startswith("v_pk_fmac") or base.startswith("v_dot2c") or base == "v_writelane_b32" or self.dpp:
                    self.src = self.src | R[0]
                if base.startswith("v_cndmask") and len(ops) == 3:
                    self.src = self.src | {("x", "vcc")}
            self.sdst = {r for r in self.dst if r[0] in ("s", "x")}
        elif mn.startswith("buffer_") or mn.startswith("global_"):
            self.kind = "vmem"
            lds = (" lds" in (" " + mods)) or ("load_lds" in mn)
            if "load" in mn and not lds:
                self.dst = R[0]; self.src = set().union(*R[1:])
            elif "atomic" in mn:
                self.src = set().union(*R)
                if "sc0" in mods: self.dst = R[0]
            elif mn in ("buffer_inv", "buffer_wbl2"):
                pass
            else:
                self.src = set().union(*R)
                self.lds_dma = lds
                if lds: self.src = self.src | {("x", "m0")}
                if "store" in mn and ("x3" in mn or "x4" in mn):
                    self.wide_store = True
                    self.c = R[0] if mn.startswith("buffer_") else R[1]
        elif mn.startswith("ds_"):
            self.kind = "ds"
            if mn.startswith("ds_read") or mn.startswith("ds_bpermute") or mn.startswith("ds_swizzle") or mn.startswith("ds_permute"):
                self.dst = R[0]; self.src = set().union(*R[1:])
            else:
                self.src = set().union(*R)
        elif mn.startswith("s_"):
            self.kind = "salu"
            if mn == "s_nop":
                self.nslots = int(ops[0], 0) + 1
            elif mn.startswith("s_cmp") or mn.startswith("s_cbranch") or mn in ("s_branch", "s_barrier", "s_waitcnt", "s_endpgm", "s_setprio", "s_sleep", "s_bitcmp1_b32", "s_bitcmp0_b32"):
                self.src = set().union(*R) if R else set()
            else:
                self.dst = R[0] if R else set()
                self.src = set().union(*R[1:]) if len(R) > 1 else set()
                if "saveexec" in mn: self.dst = self.dst | {("x", "exec")}
        else:
            raise ValueError("unknown instruction: " + text)

class State:
    HOR = 14
    def __init__(self, lst=None): self.l = list(lst or [])
    def copy(self): return State(self.l)
    def advance(self, ins):
        n = ins.nslots
        self.l = [(ag + n, i) for ag, i in self.l if ag + n <= self.HOR]
        if ins.kind in ("valu", "mfma") or ins.wide_store or (ins.kind == "salu" and ("x", "m0") in ins.dst):
            self.l.append((0, ins))
    def merge(self, o):
        d = {}
        for ag, i in self.l + o.l:
            k = id(i)
            if k not in d or ag < d[k][0]: d[k] = (ag, i)
        self.l = list(d.values())
    def need(self, c):
        need = 0
        for ag, p in self.l:
            req = 0
            if p.kind == "valu":
                vd = {r for r in p.dst if r[0] in ("v", "a")}
                if c.kind == "mfma" and vd & c.src: req = max(req, 2)
                if c.kind == "valu":
                    if c.perm and vd & c.src: req = max(req, 2)
                    if c.dpp and vd & c.src: req = max(req, 2)
                    if c.readlane and vd & c.src: req = max(req, 1)
                    if p.trans and vd & (c.src | set()): req = max(req, 1)
                    if p.sdst & c.src: req = max(req, 4 if c.readlane else 2)
                    if ("x", "exec") in p.dst: req = max(req, 4 if (c.perm or c.readlane) else (5 if c.dpp else 0))
                if c.kind == "mfma" and ("x", "exec") in p.dst: req = max(req, 4)
                if c.kind == "vmem" and p.sdst & c.src: req = max(req, 5)
                if c.kind == "salu" and p.sdst & c.src: req = max(req, 1 if not p.readlane else 2)
            elif p.kind == "mfma":
                far = 8 if p.passes == 4 else 12
                if c.kind in ("valu", "vmem", "ds") and p.dst & (c.src | c.dst): req = max(req, far)
                if c.kind == "mfma":
                    if p.dst & c.ab: req = max(req, far)
                    if p.dst & c.c:
                        same = (c.c == p.dst and c.mn == p.mn)
                        if not same: req = max(req, far - 2)
                    if (p.dst & c.dst) and not (p.dst & c.c): req = max(req, far)
                if c.kind == "valu" and p.c & c.dst: req = max(req, 3 if p.passes == 4 else 7)
            elif p.wide_store:
                if c.kind == "valu" and p.c & c.dst: req = max(req, 2)
                elif c.kind in ("ds", "vmem", "mfma") and p.c & c.dst: req = max(req, 1)
            elif p.kind == "salu":
                if c.kind == "vmem" and c.lds_dma: req = max(req, 1)
            need = max(need, req - ag)
        return need

class K:
    def __init__(self):
        self.items = []
        self.vm = 0
        self.lg = 0
        self.uid = 0
    def __call__(self, text):
        for line in text.strip().split("\n"):
            line = line.strip()
            if not line or line.startswith(";"): continue
            if line.endswith(":"):
                self.items.append(("l", line[:-1])); continue
            self.items.append(("i", line))
            mn = line.split()[0]
            if mn.startswith("buffer_") or mn.startswith("global_"):
                self.vm += 1
            elif mn.startswith("ds_"):
                self.lg += 1
    def raw(self, text): self.items.append(("r", text))
    def label(self, name): self.items.append(("l", name))
    def newlabel(self, base):
        self.uid += 1
        return "%s_%d" % (base, self.uid)
    def wait_vm(self, tok):
        n = self.vm - tok
        assert 0 <= n
        self("s_waitcnt vmcnt(%d)" % min(n, 63))
    def wait_lg(self, tok):
        n = self.lg - tok
        assert 0 <= n
        self("s_waitcnt lgkmcnt(%d)" % min(n, 15))
    def finalize(self):
        labels = {}
        pending = {}
        out = []
        st = State()
        seen = set()
        nnop = 0
        for kind, x in self.items:
            if kind == "r":
                out.append(x); st = State(); continue
            if kind == "l":
                if x in pending: st.merge(pending.pop(x))
                seen.add(x); out.append(x + ":"); continue
            ins = Ins(x)
            n = st.need(ins)
            tgt = None
            if ins.mn.startswith("s_cbranch") or ins.mn == "s_branch":
                tgt = x.split()[1]
                if tgt in seen:
                    worst = 0
                    for ag, p in st.l:
                        h = 0
                        if p.kind == "mfma": h = 8 if p.passes == 4 else 12
                        elif p.kind == "valu": h = 5 if p.sdst else 2
                        else: h = 2
                        worst = max(worst, h - ag - 1)
                    n = max(n, worst)
            while n > 0:
                m = min(n, 16)
                nop = Ins("s_nop %d" % (m - 1))
                out.append("  " + nop.text); st.advance(nop); n -= m; nnop += 1
            out.append("  " + x)
            st.advance(ins)
            if tgt is not None and tgt not in seen:
                if tgt in pending: pending[tgt].merge(st)
                else: pending[tgt] = st.copy()
            if ins.mn in ("s_branch", "s_endpgm"):
                st = State()
        assert not pending, "unresolved forward labels: %s" % list(pending)
        self.nnop = nnop
        return "\n".join(out) + "\n"
```

```python
from common import *
from proj import *
from pro import f32bits
import math

L_Q = 81920

def qattn_role(k):
    WB = 256
    acc, fr, G0 = 32, 48, 80
    rd, va, st, t0, t1, t2 = 8, 9, 10, 11, 12, 13
    QF, KF, KMF, VF, VMF = 96, 112, 144, 160, 176
    SS = 184
    PX0, PX1, PM = 196, 200, 204
    OA = 208
    vkx, vvx, vkm, vvm, vq, vo, vrow = 14, 15, 16, 17, 18, 19, 20
    vflag, vmask = 21, 22
    sseg, sbuf, snext, sT = S_P, S_P + 1, S_P + 2, S_P + 3
    k("s_and_b32 s%d, s%d, 1" % (sT, S_WAVE))
    k.lin(va, lambda t: (t & 63) * 16, t0)
    k.lin(vq, lambda t: L_Q + (t & 63) * 16 + ((t >> 6) & 1) * 4096, t0)
    k.lin(st, lambda t: L_Q + (t & 63) * 16 + (t >> 6) * 1024, t0)
    k.lin(vvx, lambda t: (t & 63) * 16 + (t >> 7) * 4096, t0)
    k.lin(vvm, lambda t: (t & 63) * 8 + (t >> 7) * 2048, t0)
    k.lin(vo, lambda t: (t & 63) * 16 + (t >> 7) * 2048 + ((t >> 6) & 1) * 32 * 4096, t0)
    k("s_lshl_b32 s40, s%d, 7" % S_TK)
    k("s_add_u32 s41, s40, %d" % (F_K * FL_STRIDE)); k("v_mov_b32 v%d, s41" % vflag)
    k("s_add_u32 s41, s40, %d" % (F_V * FL_STRIDE)); k("v_mov_b32 v%d, s41" % t0)
    k("v_and_b32 v%d, 63, v0" % t1); k("v_cmp_eq_u32 vcc, 1, v%d" % t1); k("v_cndmask_b32 v%d, v%d, v%d, vcc" % (vflag, vflag, t0))
    k("s_lshl_b32 s40, s%d, 8" % S_TK)
    k("s_add_u32 s41, s40, %d" % (F_KVM * FL_STRIDE)); k("v_mov_b32 v%d, s41" % t0)
    k("v_cmp_eq_u32 vcc, 2, v%d" % t1); k("v_cndmask_b32 v%d, v%d, v%d, vcc" % (vflag, vflag, t0))
    k("s_add_u32 s41, s41, 128"); k("v_mov_b32 v%d, s41" % t0)
    k("v_cmp_le_u32 vcc, 3, v%d" % t1); k("v_cndmask_b32 v%d, v%d, v%d, vcc" % (vflag, vflag, t0))
    k("v_bfe_u32 v%d, v0, 4, 2" % t0); k("v_lshlrev_b32 v%d, 2, v%d" % (t0, t0))
    k("v_and_b32 v%d, 15, v0" % t1); k("v_sub_u32 v%d, v%d, v%d" % (vrow, t1, t0))
    k.flag_addr(t0, F_LN1, 64, t1); k.poll_ge(S_WS, t0, t1, "1")
    k.flag_addr(t0, F_LN1 + 64, 64, t1); k.poll_ge(S_WS, t0, t1, "1")
    k("s_mov_b32 s%d, 0" % sseg); k("s_mov_b32 s%d, 0" % sbuf)
    h_dma(k, sseg, sbuf, va)
    k.label("Q_loop")
    k("s_waitcnt vmcnt(0)")
    k("s_barrier")
    sk = k.newlabel("pub")
    k("s_cmp_lg_u32 s%d, 0" % S_WAVE); k("s_cbranch_scc1 %s" % sk)
    k("s_lshl_b32 s40, s%d, 7" % S_TK); k("s_add_u32 s40, s40, %d" % (WS_FLAGS + F_O * FL_STRIDE))
    k.publish_word(40, "s%d" % sseg, t0, t1)
    k.label(sk)
    k("v_add_u32 v%d, s%d, v%d" % (rd, sbuf, va))
    k("s_xor_b32 s%d, s%d, %d" % (sbuf, sbuf, 40960))
    nx = k.newlabel("nonext")
    k("s_add_u32 s%d, s%d, 1" % (snext, sseg)); k("s_cmp_ge_u32 s%d, 64" % snext); k("s_cbranch_scc1 %s" % nx)
    h_dma(k, snext, sbuf, va)
    k.label(nx)
    proj_tile(k, WB, acc, fr, rd, True)
    A = lambda e0, T, r: acc + (e0 * 2 + T) * 4 + r
    for x in range(2):
        g = G0 + 4 * x
        src = [(A(0, x, 0), A(0, x, 1)), (A(0, x, 2), A(0, x, 3)), (A(1, x, 0), A(1, x, 1)), (A(1, x, 2), A(1, x, 3))]
        for d, (p, q) in enumerate(src): k("v_cvt_pk_bf16_f32 v%d, v%d, v%d" % (g + d, p, q))
        k("ds_write_b128 v%d, %s offset:%d" % (st, vr(g, 4), x * 4096))
    k("s_add_u32 s43, s%d, 1" % sseg)
    k.poll_ge(S_WS, vflag, t1, "s43", sleep=2)
    k("s_lshl_b32 s40, s%d, 5" % sseg); k("s_add_u32 s40, s40, s%d" % S_TK)
    k("s_lshl_b32 s41, s40, 13"); k("s_add_u32 s42, s41, %d" % WS_KX)
    for T in range(2):
        for m in range(4):
            k("buffer_load_dwordx4 %s, v%d, %s, s42 offen offset:%d sc1" % (vr(KF + 16 * T + 4 * m, 4), va, sr(S_WS, 4), m * 1024))
        if T == 0: k("s_add_u32 s42, s42, 4096")
    k("s_add_u32 s42, s41, %d" % WS_VX)
    for i in range(4): k("buffer_load_dwordx4 %s, v%d, %s, s42 offen offset:%d sc1" % (vr(VF + 4 * i, 4), vvx, sr(S_WS, 4), i * 1024))
    k("s_lshl_b32 s41, s40, 12"); k("s_add_u32 s42, s41, %d" % WS_KM)
    for m in range(4): k("buffer_load_dwordx4 %s, v%d, %s, s42 offen offset:%d sc1" % (vr(KMF + 4 * m, 4), va, sr(S_WS, 4), m * 1024))
    k("s_add_u32 s42, s41, %d" % WS_VM)
    for i in range(4): k("buffer_load_dwordx2 %s, v%d, %s, s42 offen offset:%d sc1" % (vr(VMF + 2 * i, 2), vvm, sr(S_WS, 4), i * 512))
    k("s_waitcnt lgkmcnt(0)")
    k("s_barrier")
    for m in range(4): k("ds_read_b128 %s, v%d offset:%d" % (vr(QF + 4 * m, 4), vq, m * 1024))
    k("s_waitcnt vmcnt(0) lgkmcnt(0)")
    for T in range(3):
        for m in range(4):
            Aop = KMF + 4 * m if T == 0 else KF + 16 * (T - 1) + 4 * m
            d = vr(SS + 4 * T, 4)
            k("v_mfma_f32_16x16x32_bf16 %s, %s, %s, %s" % (d, vr(Aop, 4), vr(QF + 4 * m, 4), "0" if m == 0 else d))
    NEG = 0xff800000
    k("v_mov_b32 v%d, 0x%x" % (t2, NEG))
    one = k.newlabel("t1"); both = k.newlabel("tb")
    k("s_cmp_eq_u32 s%d, 1" % sT); k("s_cbranch_scc1 %s" % one)
    for r in range(4):
        k("v_cmp_le_i32 vcc, %d, v%d" % (r, vrow))
        k("v_cndmask_b32 v%d, v%d, v%d, vcc" % (SS + 4 + r, t2, SS + 4 + r))
        k("v_mov_b32 v%d, v%d" % (SS + 8 + r, t2))
    k("s_branch %s" % both)
    k.label(one)
    for r in range(4):
        k("v_cmp_le_i32 vcc, %d, v%d" % (r, vrow))
        k("v_cndmask_b32 v%d, v%d, v%d, vcc" % (SS + 8 + r, t2, SS + 8 + r))
    k.label(both)
    c0 = DH ** -0.5 * math.log2(math.e)
    k("v_max3_f32 v%d, v%d, v%d, v%d" % (t0, SS, SS + 1, SS + 2))
    for i in range(3, 11, 2): k("v_max3_f32 v%d, v%d, v%d, v%d" % (t0, t0, SS + i, SS + i + 1))
    k("v_max_f32 v%d, v%d, v%d" % (t0, t0, SS + 11))
    for op in ("v_permlane16_swap_b32", "v_permlane32_swap_b32"):
        k("v_mov_b32 v%d, v%d" % (t1, t0)); k("%s v%d, v%d" % (op, t0, t1)); k("v_max_f32 v%d, v%d, v%d" % (t0, t0, t1))
    k("s_mov_b32 s40, 0x%08x" % f32bits(c0))
    k("v_mul_f32 v%d, s40, v%d" % (t0, t0))
    for i in range(12): k("v_fma_f32 v%d, v%d, s40, -v%d" % (SS + i, SS + i, t0))
    for i in range(12): k("v_exp_f32 v%d, v%d" % (SS + i, SS + i))
    k("v_add_f32 v%d, v%d, v%d" % (t0, SS, SS + 1)); k("v_add_f32 v%d, v%d, v%d" % (t1, SS + 2, SS + 3))
    k("v_add_f32 v%d, v%d, v%d" % (t0, t0, t1)); k("v_mul_f32 v%d, 0.5, v%d" % (t0, t0))
    for i in range(4, 12): k("v_add_f32 v%d, v%d, v%d" % (t0, t0, SS + i))
    k.xsum16_32([t0], t1)
    k("v_rcp_f32 v%d, v%d" % (t2, t0))
    k("v_cvt_pk_bf16_f32 v%d, v%d, v%d" % (PM, SS, SS + 1)); k("v_cvt_pk_bf16_f32 v%d, v%d, v%d" % (PM + 1, SS + 2, SS + 3))
    for d in range(4): k("v_cvt_pk_bf16_f32 v%d, v%d, v%d" % (PX0 + d, SS + 4 + 2 * d, SS + 5 + 2 * d))
    for i in range(4): k("v_mfma_f32_16x16x16_bf16 %s, %s, %s, 0" % (vr(OA + 4 * i, 4), vr(VMF + 2 * i, 2), vr(PM, 2)))
    for i in range(4): k("v_mfma_f32_16x16x32_bf16 %s, %s, %s, %s" % (vr(OA + 4 * i, 4), vr(VF + 4 * i, 4), vr(PX0, 4), vr(OA + 4 * i, 4)))
    for i in range(16): k("v_mul_f32 v%d, v%d, v%d" % (OA + i, OA + i, t2))
    k("s_lshl_b32 s40, s%d, 6" % sseg); k("s_add_u32 s40, s40, s%d" % S_TK); k("s_lshl_b32 s40, s40, 12")
    k("s_add_u32 s40, s40, %d" % WS_O)
    for x in range(2):
        g = G0 + 4 * x
        for d in range(4): k("v_cvt_pk_bf16_f32 v%d, v%d, v%d" % (g + d, OA + 8 * x + 2 * d, OA + 8 * x + 2 * d + 1))
        k("buffer_store_dwordx4 %s, v%d, %s, s40 offen offset:%d sc1" % (vr(g, 4), vo, sr(S_WS, 4), x * 1024))
    k("s_add_u32 s%d, s%d, 1" % (sseg, sseg)); k("s_cmp_lt_u32 s%d, 64" % sseg); k("s_cbranch_scc1 Q_loop")
    k("s_waitcnt vmcnt(0)"); k("s_barrier")
    sk = k.newlabel("pub")
    k("s_cmp_lg_u32 s%d, 0" % S_WAVE); k("s_cbranch_scc1 %s" % sk)
    k("s_lshl_b32 s40, s%d, 7" % S_TK); k("s_add_u32 s40, s40, %d" % (WS_FLAGS + F_O * FL_STRIDE))
    k.publish_word(40, "64", t0, t1)
    k.label(sk)
```

```python
from common import *
from pro import f32bits
import math

L_MEMT = 0
L_QK   = 12288
L_VT   = 16384
L_KXV  = 20480
WQ, WK, WV = 256, 256 + 80, 256 + 160
def WO(T): return 256 + 240 + 8 * T if T < 2 else 192 + 8 * (T - 2)
AF = 20
KXF, VXF = 60, 76
AQ, AK, AV = 92, 96, 100
QB, KMF = 104, 112
SS, SP = 120, 132
PX, PM = 144, 148
PXb, PMb = 150, 154
VMF = 156
AO = 164
AOP = 172
GR = 132
V_IDX, V_SELN, V_SELM = 1, 4, 8
V_AFA, V_QKW, V_QKR, V_VTW, V_L16, V_SCW, V_SCR, V_PW, V_MASKLO = 2, 3, 12, 13, 14, 15, 16, 17, 18
V_NR, V_NW, V_SLW = 19, 188, 189
V_T0, V_T1, V_T2, V_T3 = 184, 185, 186, 187
V_VTR, V_KMW = 190, 191
S_STEP, S_TAG, S_SLOT, S_G, S_HEAD, S_HALF, S_PROD = S_P, S_P + 1, S_P + 2, S_P + 3, S_P + 4, S_P + 5, S_P + 6
S_SCW, S_SCR, S_PW, S_PR, S_SLL, S_SLR, S_NR, S_UNIT = S_P + 7, S_P + 8, S_P + 9, S_P + 10, S_P + 11, S_P + 12, S_P + 13, S_P + 14
S_KVS = S_P + 15
import os
DUMP_MEM = bool(int(os.environ.get("DUMP_MEM", "0")))

SSTEP = int(os.environ.get('SSTEP', '20'))
DUMP_REG = bool(int(os.environ.get("DUMP_REG", "0")))
def dump(k, reg, n, slot):
    if not DUMP_REG: return
    sk = k.newlabel("dump")
    k("s_cmp_lg_u32 s%d, %d" % (S_STEP, int(os.environ.get("DUMP_STEP", "0")))); k("s_cbranch_scc1 %s" % sk)
    k("s_lshl_b32 s90, s%d, 2" % S_PROD); k("s_add_u32 s90, s90, s%d" % S_WAVE); k("s_mul_i32 s90, s90, %d" % (128 * 256))
    k("s_add_u32 s90, s90, %d" % (WS_STAMP + slot * 256))
    k("v_and_b32 v182, 63, v0"); k("v_lshlrev_b32 v182, 2, v182")
    k("s_nop 7"); k("s_nop 7")
    for i in range(n):
        k("buffer_store_dword v%d, v182, %s, s90 offen" % (reg + i, sr(S_WS, 4)))
        k("s_add_u32 s90, s90, 256")
    k("s_waitcnt vmcnt(0)")
    k.label(sk)

def swz(kap): return (kap * 16) ^ (((kap >> 4) & 1) << 7)

def load_qkv(k, srd, wbase, lbase, va, vb, issue_only=False, read_only=False, ra=None):
    pass

def w64_issue(k, srd, lbase, va, vb):
    k("s_lshl_b32 s41, s%d, 8" % S_HEAD)
    k("s_lshl_b32 s42, s%d, 7" % S_HALF)
    k("s_add_u32 s41, s41, s42")
    k("s_mul_i32 s42, s%d, %d" % (S_WAVE, 160 * 8192))
    k("s_add_u32 s41, s41, s42")
    k("s_mul_i32 s42, s%d, %d" % (S_WAVE, 20 * 1024))
    k("s_add_u32 s42, s42, %d" % lbase)
    for i in range(20):
        k("s_mov_b32 m0, s42")
        k("buffer_load_dwordx4 v%d, %s, s41 offen lds" % (vb if i & 1 else va, sr(srd, 4)))
        if i < 19:
            k("s_add_u32 s41, s41, %d" % (8 * 8192)); k("s_add_u32 s42, s42, 1024")

def w64_read(k, wbase, ra):
    for m in range(10):
        for T in range(4):
            row = 64 * m + 4 * (T & 1) + 32 * (T >> 1)
            off = row * 128
            k("ds_read_b64_tr_b16 %s, v%d offset:%d" % (ur(wbase + 8 * m + 2 * T, 2), ra + (1 if off >= 65536 else 0), off % 65536))

def wo_issue(k, srd, lbase, va):
    k("s_mul_i32 s41, s%d, %d" % (S_HEAD, 128 * 1280))
    k("s_mul_i32 s42, s%d, %d" % (S_HALF, 64 * 1280))
    k("s_add_u32 s41, s41, s42")
    k("s_mul_i32 s42, s%d, %d" % (S_WAVE, 20 * 1024))
    k("s_add_u32 s41, s41, s42")
    k("s_add_u32 s42, s42, %d" % lbase)
    for i in range(20):
        k("s_mov_b32 m0, s42")
        k("buffer_load_dwordx4 v%d, %s, s41 offen lds" % (va, sr(srd, 4)))
        if i < 19:
            k("s_add_u32 s41, s41, 1024"); k("s_add_u32 s42, s42, 1024")

def wo_row(qq, Tp, rp):
    return 32 * (rp >> 1) + 16 * (qq & 1) + 4 * ((qq >> 1) + 2 * (Tp >> 1)) + 2 * (Tp & 1) + (rp & 1)

def chain_role(k):
    k.stamp_rt(30, 181)
    k("s_mov_b32 s%d, s%d" % (S_G, S_XCC))
    k("s_lshr_b32 s%d, s%d, 1" % (S_HEAD, S_TK))
    k("s_lshl_b32 s40, s%d, 4" % S_G)
    k("s_add_u32 s%d, s%d, s40" % (S_HEAD, S_HEAD))
    k("s_and_b32 s%d, s%d, 1" % (S_HALF, S_TK))
    k("s_lshl_b32 s40, s%d, 5" % S_G)
    k("s_add_u32 s%d, s%d, s40" % (S_PROD, S_TK))
    k.srd(S_R0, "wq"); k.srd(S_R1, "wk"); k.srd(S_R2, "wv"); k.srd(S_R3, "wo"); k.srd(S_R4, "mem0")
    va, vb, ra, t0, t1 = 20, 21, 22, 24, 25
    k.lin(va, lambda t: (t & 7) * 16, t0)
    k.lin(t1, lambda t: (((t & 63) >> 4) & 1) * 32, t0)
    k("v_xor_b32 v%d, v%d, v%d" % (va, va, t1))
    k.lin(t1, lambda t: ((t & 63) >> 3) * 8192, t0)
    k("v_add_u32 v%d, v%d, v%d" % (va, va, t1))
    k("v_xor_b32 v%d, 64, v%d" % (vb, va))
    k.srd_wait()
    w64_issue(k, S_R0, 0, va, vb)
    w64_issue(k, S_R1, 81920, va, vb)
    CL = 28
    for i in range(4): k("v_mov_b32 v%d, 0x00010001" % (CL + i))
    k.lin(t1, lambda t: t * 16, t0)
    k("s_mul_i32 s40, s%d, %d" % (S_PROD, 6 * 1024)); k("s_add_u32 s40, s40, %d" % WS_SC)
    k("buffer_store_dwordx4 %s, v%d, %s, s40 offen" % (vr(CL, 4), t1, sr(S_WS, 4)))
    k("s_add_u32 s40, s40, 2048")
    k("buffer_store_dwordx4 %s, v%d, %s, s40 offen" % (vr(CL, 4), t1, sr(S_WS, 4)))
    k("s_mul_i32 s40, s%d, %d" % (S_G, 2 * PART_SLOT)); k("s_mul_i32 s41, s%d, 20480" % S_TK)
    k("s_add_u32 s40, s40, s41"); k("s_add_u32 s40, s40, %d" % WS_PART)
    for i in range(5):
        k("buffer_store_dwordx4 %s, v%d, %s, s40 offen" % (vr(CL, 4), t1, sr(S_WS, 4)))
        if i < 4: k("s_add_u32 s40, s40, 4096")
    k.lin(t1, lambda t: t * 16, t0)
    k("v_cmp_gt_u32 vcc, 40, v0")
    k("v_mov_b32 v%d, 0x7ffffff0" % t0)
    k("v_cndmask_b32 v%d, v%d, v%d, vcc" % (t1, t0, t1))
    k("s_mul_i32 s40, s%d, %d" % (S_G, 4 * SL_SZ)); k("s_mul_i32 s41, s%d, 640" % S_TK)
    k("s_add_u32 s40, s40, s41"); k("s_add_u32 s40, s40, %d" % WS_SL)
    k("buffer_store_dwordx4 %s, v%d, %s, s40 offen" % (vr(CL, 4), t1, sr(S_WS, 4)))
    k("s_add_u32 s40, s40, %d" % (2 * SL_SZ))
    k("buffer_store_dwordx4 %s, v%d, %s, s40 offen sc1" % (vr(CL, 4), t1, sr(S_WS, 4)))
    k.lin(ra, lambda t: (t >> 6) * 2 + ((t & 3) >> 1), t0)
    k.lin(ra + 1, lambda t: (((t >> 2) & 3) >> 1) * 2 + ((t >> 4) & 1) * 4, t0)
    k("v_xor_b32 v%d, v%d, v%d" % (ra, ra, ra + 1))
    k("v_lshlrev_b32 v%d, 4, v%d" % (ra, ra))
    k.lin(ra + 1, lambda t: (8 * ((t >> 4) & 3) + ((t >> 2) & 3)) * 128 + (t & 1) * 8, t0)
    k("v_add_u32 v%d, v%d, v%d" % (ra, ra, ra + 1))
    k("v_add_u32 v%d, 0x10000, v%d" % (ra + 1, ra))
    k("s_waitcnt vmcnt(0)"); k("s_barrier")
    cinit = k.newlabel("cinit")
    k("s_cmp_lg_u32 s%d, 0" % S_WAVE); k("s_cbranch_scc1 %s" % cinit)
    k.atomic_inc_dbg(DBG_CHI, t0, t1)
    k.label(cinit)
    w64_read(k, WQ, ra)
    k("v_add_u32 v%d, %d, v%d" % (ra, 81920, ra)); k("v_add_u32 v%d, %d, v%d" % (ra + 1, 81920, ra + 1))
    w64_read(k, WK, ra)
    k("v_subrev_u32 v%d, %d, v%d" % (ra, 81920, ra)); k("v_subrev_u32 v%d, %d, v%d" % (ra + 1, 81920, ra + 1))
    k("s_waitcnt lgkmcnt(0)"); k("s_barrier")
    k.stamp_rt(31, 181)
    w64_issue(k, S_R2, 0, va, vb)
    k.lin(va, lambda t: (t & 63) * 16, t0)
    wo_issue(k, S_R3, 81920, va)
    k("s_waitcnt vmcnt(20)"); k("s_barrier")
    w64_read(k, WV, ra)
    k("s_waitcnt vmcnt(0)"); k("s_barrier")
    for Tp in range(4):
        k.lin(ra + (Tp & 1), lambda t: 81920 + wo_row((t >> 4) & 3, Tp, (t >> 2) & 3) * 1280 + (t >> 6) * 320 + (t & 3) * 8, t0)
        for T in range(10):
            k("ds_read_b64_tr_b16 %s, v%d offset:%d" % (ur(WO(T) + 2 * Tp, 2), ra + (Tp & 1), T * 32))
    k("s_waitcnt lgkmcnt(0)"); k("s_barrier")
    k.stamp_rt(32, 181)
    k("v_and_b32 v%d, 8, v0" % t0)
    k("v_cmp_eq_u32 vcc, 0, v%d" % t0)
    k("v_mov_b32 v%d, 0xeeee" % t0); k("v_mov_b32 v%d, 0x4444" % t1)
    k("v_cndmask_b32 v%d, v%d, v%d, vcc" % (V_IDX, t0, t1))
    k("v_mov_b32 v%d, -1" % t1); k("v_mov_b32 v%d, 0" % t0)
    k("v_cndmask_b32 v%d, v%d, v%d, vcc" % (V_MASKLO, t0, t1))
    k("v_and_b32 v%d, 15, v0" % t0)
    for d in range(4):
        k("v_cmp_eq_u32 vcc, %d, v%d" % (2 * d, t0)); k("v_mov_b32 v%d, 0" % t1); k("v_mov_b32 v%d, 0x3f80" % V_T2)
        k("v_cndmask_b32 v%d, v%d, v%d, vcc" % (V_SELM + d, t1, V_T2))
        k("v_cmp_eq_u32 vcc, %d, v%d" % (2 * d + 1, t0)); k("v_mov_b32 v%d, 0x3f800000" % V_T2)
        k("v_cndmask_b32 v%d, v%d, v%d, vcc" % (V_SELM + d, V_SELM + d, V_T2))
    k("v_and_b32 v%d, 7, v0" % t0)
    k("v_bfe_u32 v%d, v0, 3, 1" % V_T0); k("v_bfe_u32 v%d, v0, 5, 1" % V_T1)
    k("v_cmp_eq_u32 s[36:37], v%d, v%d" % (V_T0, V_T1))
    for d in range(4):
        k("v_cmp_eq_u32 vcc, %d, v%d" % (2 * d, t0)); k("v_mov_b32 v%d, 0" % t1); k("v_mov_b32 v%d, 0x3f80" % V_T2)
        k("v_cndmask_b32 v%d, v%d, v%d, vcc" % (V_SELN + d, t1, V_T2))
        k("v_cmp_eq_u32 vcc, %d, v%d" % (2 * d + 1, t0)); k("v_mov_b32 v%d, 0x3f800000" % V_T2)
        k("v_cndmask_b32 v%d, v%d, v%d, vcc" % (V_SELN + d, V_SELN + d, V_T2))
        k("v_cndmask_b32 v%d, v%d, v%d, s[36:37]" % (V_SELN + d, t1, V_SELN + d))
    def afa(t):
        q, rp, c = (t >> 4) & 3, (t >> 2) & 3, t & 3
        return L_MEMT + (16 * q + 4 * (rp >> 1) + (rp & 1) + 2 * (c >> 1)) * 16 + (c & 1) * 8
    k.lin(V_AFA, afa, t0)
    k.lin(t1, lambda t: ((t >> 4) & 1) * 128, t0)
    k("v_xor_b32 v%d, v%d, v%d" % (V_AFA, V_AFA, t1))
    k("v_xor_b32 v%d, 128, v%d" % (V_T3, V_AFA))
    k("v_mov_b32 v%d, v%d" % (V_L16 + 0, V_T3))
    V_AFB = 183
    k("v_mov_b32 v%d, v%d" % (V_AFB, V_T3))
    k.lin(V_L16, lambda t: (t & 63) * 16, t0)
    k.lin(V_QKW, lambda t: L_QK + ((t >> 5) & 1) * 1024 + (16 * (t >> 6) + (t & 15)) * 16 + ((t >> 4) & 1) * 8, t0)
    k.lin(V_QKR, lambda t: L_QK + (4 * ((t >> 4) & 3) + ((t >> 2) & 3)) * 16 + (t & 1) * 8, t0)
    k.lin(V_VTW, lambda t: L_VT + (t >> 6) * 512 + (t & 63) * 8, t0)
    k.lin(V_VTR, lambda t: L_VT + (t & 63) * 8, t0)
    k.lin(V_SCW, lambda t: (t & 63) * 16 + (t >> 6) * 1024, t0)
    k.lin(V_SCR, lambda t: (t & 63) * 16, t0)
    k.lin(V_PW, lambda t: (((t >> 4) & 1) * 2 + ((t >> 5) & 1)) * 8192 + (t & 15) * 16 + (t >> 6) * 10 * 8192, t0)
    k.lin(V_NR, lambda t: (16 * ((t >> 5) & 1) + (t & 15)) * 16 + (t >> 6) * 2560, t0)
    k("s_xor_b32 s40, s%d, 1" % S_G)
    k("s_mul_i32 s40, s40, %d" % (4 * SL_SZ)); k("s_add_u32 s40, s40, %d" % (2 * SL_SZ))
    k("s_mul_i32 s41, s%d, %d" % (S_G, 4 * SL_SZ))
    k("v_bfe_u32 v%d, v0, 4, 1" % t0)
    k("v_cmp_eq_u32 vcc, 0, v%d" % t0)
    k("v_mov_b32 v%d, s40" % t0); k("v_mov_b32 v%d, s41" % t1)
    k("v_cndmask_b32 v%d, v%d, v%d, vcc" % (t0, t0, t1))
    k("v_add_u32 v%d, v%d, v%d" % (V_NR, V_NR, t0))
    k.lin(V_NW, lambda t: L_MEMT + (16 * ((t >> 5) & 1) + (t & 15)) * 16 + ((t >> 4) & 1) * 8 + (t >> 6) * 2560, t0)
    k.lin(t1, lambda t: ((t >> 5) & 1) * 128, t0)
    k("v_xor_b32 v%d, v%d, v%d" % (V_NW, V_NW, t1))
    k.lin(V_SLW, lambda t: (t & 15) * 16 + ((t >> 4) & 1) * 8 + ((t >> 5) & 1) * 0x700000 * 1, t0)
    k("v_bfe_u32 v%d, v0, 5, 1" % t0)
    k("v_cmp_eq_u32 vcc, 0, v%d" % t0)
    k("v_mov_b32 v%d, 0x7ffffff0" % t0)
    k("v_cndmask_b32 v%d, v%d, v%d, vcc" % (V_SLW, t0, V_SLW))
    k("s_mul_i32 s%d, s%d, %d" % (S_SCW, S_PROD, 6 * 1024)); k("s_add_u32 s%d, s%d, %d" % (S_SCW, S_SCW, WS_SC))
    k("s_xor_b32 s40, s%d, 1" % S_PROD)
    k("s_mul_i32 s%d, s40, %d" % (S_SCR, 6 * 1024)); k("s_add_u32 s%d, s%d, %d" % (S_SCR, S_SCR, WS_SC))
    k("s_mul_i32 s%d, s%d, %d" % (S_PW, S_G, 2 * PART_SLOT)); k("s_add_u32 s%d, s%d, %d" % (S_PW, S_PW, WS_PART))
    k("s_mov_b32 s%d, s%d" % (S_PR, S_PW))
    k("s_lshl_b32 s40, s%d, 8" % S_TK); k("s_add_u32 s%d, s%d, s40" % (S_PW, S_PW))
    k("s_mov_b32 s%d, 255" % S_UNIT)
    k("s_cmp_eq_u32 s%d, 0" % S_WAVE); k("s_cselect_b32 s%d, s%d, s%d" % (S_UNIT, S_TK, S_UNIT))
    k("s_add_u32 s40, s%d, 32" % S_TK)
    k("s_cmp_lt_u32 s%d, 8" % S_TK); k("s_cselect_b32 s40, s40, 255")
    k("s_cmp_eq_u32 s%d, 1" % S_WAVE); k("s_cselect_b32 s%d, s40, s%d" % (S_UNIT, S_UNIT))
    for i in range(3):
        k.lin(t1, lambda t: t * 2 + i * 512, t0)
        for r in range(8):
            k("buffer_load_ushort v%d, v%d, %s, 0 offen offset:%d" % (28 + r, t1, sr(S_R4, 4), 0) if r == 0 else
              "buffer_load_ushort v%d, v%d, %s, s%d offen" % (28 + r, t1, sr(S_R4, 4), 40))
            if r < 7: k("s_mov_b32 s40, %d" % ((r + 1) * 1280))
        k("s_waitcnt vmcnt(0)")
        for d in range(4): k("v_lshl_or_b32 v%d, v%d, 16, v%d" % (36 + d, 28 + 2 * d + 1, 28 + 2 * d))
        k.lin(V_T0, lambda t: t * 16 + i * 4096, t0)
        k("v_bfe_u32 v%d, v0, 4, 1" % V_T1); k("v_lshlrev_b32 v%d, 7, v%d" % (V_T1, V_T1))
        k("v_xor_b32 v%d, v%d, v%d" % (V_T0, V_T0, V_T1))
        if i == 2:
            k("v_cmp_gt_u32 vcc, 128, v0"); k("v_mov_b32 v%d, %d" % (V_T1, 16000))
            k("v_cndmask_b32 v%d, v%d, v%d, vcc" % (V_T0, V_T1, V_T0))
        k("ds_write_b128 v%d, %s" % (V_T0, vr(36, 4)))
    k.poll_dbg(DBG_CHI, 64, t0, t1)
    k.poll_dbg(DBG_MODA, N_MODA, t0, t1)
    k.stamp_rt(33, 181)
    k("s_mov_b32 s%d, 0" % S_STEP)
    kv_fetch(k, wait_flags=True)
    k("s_waitcnt vmcnt(0) lgkmcnt(0)")

    k.stamp_rt(34, 181)
    k.label("C_step")
    k("s_barrier")
    k.stamp(0, 181, S_STEP, SSTEP)
    k("s_lshr_b32 s%d, s%d, 1" % (S_TAG, S_STEP)); k("s_and_b32 s%d, s%d, 1" % (S_TAG, S_TAG))
    k("s_and_b32 s%d, s%d, 1" % (S_SLOT, S_STEP))
    tokA = []
    for m in range(10):
        off = m * 1024
        k("ds_read_b64_tr_b16 %s, v%d offset:%d" % (vr(AF + 4 * m, 2), V_AFA, off))
        k("ds_read_b64_tr_b16 %s, v%d offset:%d" % (vr(AF + 4 * m + 2, 2), V_AFB, off))
        tokA.append(k.lg)
    for i in range(12): k("v_mov_b32 v%d, 0" % (AQ + i))
    for m in range(10):
        k.wait_lg(tokA[m])
        k("v_smfmac_f32_16x16x64_bf16 %s, %s, %s, v%d" % (vr(AQ, 4), vr(AF + 4 * m, 4), ur(WQ + 8 * m, 8), V_IDX))
        k("v_smfmac_f32_16x16x64_bf16 %s, %s, %s, v%d" % (vr(AK, 4), vr(AF + 4 * m, 4), ur(WK + 8 * m, 8), V_IDX))
    for i in range(4): k("ds_read_b128 %s, v%d offset:%d" % (vr(KXF + 4 * i, 4), V_L16, L_KXV + i * 1024))
    for i in range(4): k("ds_read_b128 %s, v%d offset:%d" % (vr(VXF + 4 * i, 4), V_L16, L_KXV + 4096 + i * 1024))
    for m in range(10):
        k("v_smfmac_f32_16x16x64_bf16 %s, %s, %s, v%d" % (vr(AV, 4), vr(AF + 4 * m, 4), ur(WV + 8 * m, 8), V_IDX))
    k.stamp(1, 181, S_STEP, SSTEP)
    for r in range(4): k("v_permlane32_swap_b32 v%d, v%d" % (AQ + r, AK + r))
    for r in range(4): k("v_add_f32 v%d, v%d, v%d" % (AQ + r, AQ + r, AK + r))
    k("v_cvt_pk_bf16_f32 v%d, v%d, v%d" % (V_T0, AQ, AQ + 1))
    k("v_cvt_pk_bf16_f32 v%d, v%d, v%d" % (V_T1, AQ + 2, AQ + 3))
    k("ds_write_b64 v%d, %s" % (V_QKW, vr(V_T0, 2)))
    k("v_cvt_pk_bf16_f32 v%d, v%d, v%d" % (V_T2, AV, AV + 1))
    k("v_cvt_pk_bf16_f32 v%d, v%d, v%d" % (V_T3, AV + 2, AV + 3))
    k("ds_write_b64 v%d, %s" % (V_VTW, vr(V_T2, 2)))
    k("s_waitcnt lgkmcnt(0)")
    k("s_barrier")
    k.stamp(2, 181, S_STEP, SSTEP)
    for m in range(2):
        for t in range(2):
            k("ds_read_b64_tr_b16 %s, v%d offset:%d" % (vr(QB + 4 * m + 2 * t, 2), V_QKR, (32 * m + 16 * t) * 16))
            k("ds_read_b64_tr_b16 %s, v%d offset:%d" % (vr(KMF + 4 * m + 2 * t, 2), V_QKR, 1024 + (32 * m + 16 * t) * 16))
    for i in range(4): k("ds_read_b64 %s, v%d offset:%d" % (vr(VMF + 2 * i, 2), V_VTR, i * 512))
    k("s_waitcnt lgkmcnt(0)")
    k.stamp(3, 181, S_STEP, SSTEP)
    nopub = k.newlabel("nokvm")
    k("s_cmp_lg_u32 s%d, 3" % S_WAVE); k("s_cbranch_scc1 %s" % nopub)
    k("s_lshl_b32 s40, s%d, 5" % S_STEP); k("s_add_u32 s40, s40, s%d" % S_HEAD); k("s_lshl_b32 s40, s40, 12")
    k("s_lshl_b32 s41, s%d, 11" % S_HALF); k("s_add_u32 s40, s40, s41")
    k("s_add_u32 s41, s40, %d" % WS_KM)
    for m in range(2):
        k("buffer_store_dwordx4 %s, v%d, %s, s41 offen offset:%d sc1" % (vr(KMF + 4 * m, 4), V_L16, sr(S_WS, 4), m * 1024))
    k("s_add_u32 s41, s40, %d" % WS_VM)
    k("v_lshrrev_b32 v%d, 1, v%d" % (V_T0, V_L16))
    for i in range(4):
        k("buffer_store_dwordx2 %s, v%d, %s, s41 offen offset:%d sc1" % (vr(VMF + 2 * i, 2), V_T0, sr(S_WS, 4), i * 512))
    k("s_waitcnt vmcnt(0)")
    k("s_lshl_b32 s40, s%d, 7" % S_PROD); k("s_add_u32 s40, s40, %d" % (WS_FLAGS + F_KVM * FL_STRIDE))
    k("s_add_u32 s41, s%d, 1" % S_STEP)
    k.publish_word(40, "s41", V_T0, V_T1)
    k.label(nopub)
    k("s_cmp_eq_u32 s%d, 63" % S_STEP); k("s_cbranch_scc1 C_done")
    k.stamp(4, 181, S_STEP, SSTEP)
    for T in range(3):
        for m in range(2):
            A = KMF + 4 * m if T == 0 else KXF + 4 * (2 * (T - 1) + m)
            d = vr(SS + 4 * T, 4)
            k("v_mfma_f32_16x16x32_bf16 %s, %s, %s, %s" % (d, vr(A, 4), vr(QB + 4 * m, 4), "0" if m == 0 else d))
    dump(k, SS, 12, 0)
    k.stamp(5, 181, S_STEP, SSTEP)
    k("s_mul_i32 s40, s%d, 3072" % S_SLOT)
    k("s_add_u32 s41, s40, s%d" % S_SCR); k("s_add_u32 s40, s40, s%d" % S_SCW)
    for T in range(3):
        k("v_and_or_b32 v%d, v%d, -2, s%d" % (SS + 4 * T, SS + 4 * T, S_TAG))
    nost = k.newlabel("nost")
    for T in range(3):
        lb = k.newlabel("st")
        k("s_cmp_lg_u32 s%d, %d" % (S_WAVE, T)); k("s_cbranch_scc1 %s" % lb)
        k("buffer_store_dwordx4 %s, v%d, %s, s40 offen" % (vr(SS + 4 * T, 4), V_SCW, sr(S_WS, 4)))
        k.label(lb)
    loop, done = k.newlabel("xs"), k.newlabel("xsd")
    k.label(loop)
    for T in range(3):
        k("buffer_load_dwordx4 %s, v%d, %s, s41 offen offset:%d sc1" % (vr(SP + 4 * T, 4), V_SCR, sr(S_WS, 4), T * 1024))
    k("s_waitcnt vmcnt(0)")
    k("v_xor_b32 v%d, s%d, v%d" % (V_T0, S_TAG, SP))
    k("v_mov_b32 v%d, s%d" % (V_T1, S_TAG))
    k("v_bitop3_b32 v%d, v%d, v%d, v%d bitop3:0xf6" % (V_T0, V_T0, SP + 4, V_T1))
    k("v_bitop3_b32 v%d, v%d, v%d, v%d bitop3:0xf6" % (V_T0, V_T0, SP + 8, V_T1))
    k("v_and_b32 v%d, 1, v%d" % (V_T0, V_T0))
    k("v_cmp_ne_u32 vcc, 0, v%d" % V_T0)
    k("s_cbranch_vccz %s" % done)
    k.spin_tail(loop, done)
    dump(k, SP, 12, 12)
    k.stamp(6, 181, S_STEP, SSTEP)
    c0 = DH ** -0.5 * math.log2(math.e)
    for i in range(12): k("v_add_f32 v%d, v%d, v%d" % (SS + i, SS + i, SP + i))
    k("v_max3_f32 v%d, v%d, v%d, v%d" % (V_T0, SS, SS + 1, SS + 2))
    for i in range(3, 11, 2): k("v_max3_f32 v%d, v%d, v%d, v%d" % (V_T0, V_T0, SS + i, SS + i + 1))
    k("v_max_f32 v%d, v%d, v%d" % (V_T0, V_T0, SS + 11))
    for op in ("v_permlane16_swap_b32", "v_permlane32_swap_b32"):
        k("v_mov_b32 v%d, v%d" % (V_T1, V_T0)); k("%s v%d, v%d" % (op, V_T0, V_T1)); k("v_max_f32 v%d, v%d, v%d" % (V_T0, V_T0, V_T1))
    k("s_mov_b32 s40, 0x%08x" % f32bits(c0))
    k("v_mul_f32 v%d, s40, v%d" % (V_T0, V_T0))
    for i in range(12): k("v_fma_f32 v%d, v%d, s40, -v%d" % (SS + i, SS + i, V_T0))
    for i in range(12): k("v_exp_f32 v%d, v%d" % (SS + i, SS + i))
    k("v_add_f32 v%d, v%d, v%d" % (V_T0, SS, SS + 1)); k("v_add_f32 v%d, v%d, v%d" % (V_T1, SS + 2, SS + 3))
    k("v_add_f32 v%d, v%d, v%d" % (V_T0, V_T0, V_T1)); k("v_mul_f32 v%d, 0.5, v%d" % (V_T0, V_T0))
    for i in range(4, 12): k("v_add_f32 v%d, v%d, v%d" % (V_T0, V_T0, SS + i))
    dump(k, SS, 12, 24)
    k.xsum16_32([V_T0], V_T1)
    k("v_rcp_f32 v%d, v%d" % (V_T2, V_T0))
    k("v_cvt_pk_bf16_f32 v%d, v%d, v%d" % (PM, SS, SS + 1)); k("v_cvt_pk_bf16_f32 v%d, v%d, v%d" % (PM + 1, SS + 2, SS + 3))
    for d in range(4): k("v_cvt_pk_bf16_f32 v%d, v%d, v%d" % (PX + d, SS + 4 + 2 * d, SS + 5 + 2 * d))
    for d in range(2): k("v_bfi_b32 v%d, v%d, 0, v%d" % (PMb + d, V_MASKLO, PM + d)); k("v_and_b32 v%d, v%d, v%d" % (PM + d, V_MASKLO, PM + d))
    for d in range(4): k("v_bfi_b32 v%d, v%d, 0, v%d" % (PXb + d, V_MASKLO, PX + d)); k("v_and_b32 v%d, v%d, v%d" % (PX + d, V_MASKLO, PX + d))
    k.stamp(7, 181, S_STEP, SSTEP)
    for t in range(2):
        k("v_mfma_f32_16x16x16_bf16 %s, %s, %s, 0" % (vr(AO + 4 * t, 4), vr(VMF + 2 * t, 2), vr(PM, 2)))
    for t in range(2):
        d = vr(AO + 4 * t, 4)
        k("v_mfma_f32_16x16x16_bf16 %s, %s, %s, %s" % (d, vr(VMF + 2 * (t + 2), 2), vr(PMb, 2), d))
    for i in range(6): k("v_mov_b32 v%d, 0" % (AF + i))
    for t in range(2):
        d = vr(AO + 4 * t, 4)
        k("v_mfma_f32_16x16x32_bf16 %s, %s, %s, %s" % (d, vr(VXF + 4 * t, 4), vr(PX, 4), d))
    for t in range(2):
        d = vr(AO + 4 * t, 4)
        k("v_mfma_f32_16x16x32_bf16 %s, %s, %s, %s" % (d, vr(VXF + 4 * (t + 2), 4), vr(PXb, 4), d))
    for i in range(6, 40): k("v_mov_b32 v%d, 0" % (AF + i))
    for i in range(8): k("v_mul_f32 v%d, v%d, v%d" % (AO + i, AO + i, V_T2))
    for d in range(4): k("v_cvt_pk_bf16_f32 v%d, v%d, v%d" % (AOP + d, AO + 2 * d, AO + 2 * d + 1))
    dump(k, AO, 8, 36)
    dump(k, VMF, 8, 44)
    dump(k, VXF, 16, 52)
    k.stamp(8, 181, S_STEP, SSTEP)
    for T in range(10):
        k("v_smfmac_f32_16x16x64_bf16 %s, %s, %s, v%d" % (vr(AF + 4 * T, 4), vr(AOP, 4), ur(WO(T), 8), V_IDX))
    dump(k, AF, 40, 68)
    k("s_mul_i32 s40, s%d, %d" % (S_SLOT, PART_SLOT)); k("s_add_u32 s40, s40, s%d" % S_PW)
    def fold(Ta, Tb, g):
        for r in range(4): k("v_permlane32_swap_b32 v%d, v%d" % (AF + 4 * Ta + r, AF + 4 * Tb + r))
        for r in range(4): k("v_add_f32 v%d, v%d, v%d" % (AF + 4 * Ta + r, AF + 4 * Ta + r, AF + 4 * Tb + r))
        k("v_cvt_pk_bf16_f32 v%d, v%d, v%d" % (g, AF + 4 * Ta, AF + 4 * Ta + 1))
        k("v_cvt_pk_bf16_f32 v%d, v%d, v%d" % (g + 1, AF + 4 * Ta + 2, AF + 4 * Ta + 3))
    for Gi in range(3):
        g = GR + 4 * Gi
        fold(4 * Gi, 4 * Gi + 1, g)
        if Gi < 2: fold(4 * Gi + 2, 4 * Gi + 3, g + 2)
        else:
            k("v_mov_b32 v%d, v%d" % (g + 2, g)); k("v_mov_b32 v%d, v%d" % (g + 3, g + 1))
        k("v_permlane16_swap_b32 v%d, v%d" % (g, g + 2)); k("v_permlane16_swap_b32 v%d, v%d" % (g + 1, g + 3))
        k("v_and_or_b32 v%d, v%d, -2, s%d" % (g, g, S_TAG))
        if Gi < 2:
            k("buffer_store_dwordx4 %s, v%d, %s, s40 offen" % (vr(g, 4), V_PW, sr(S_WS, 4)))
            k("s_add_u32 s40, s40, %d" % (4 * 8192))
        else:
            k("v_bfe_u32 v%d, v0, 4, 1" % V_T0); k("v_cmp_eq_u32 vcc, 0, v%d" % V_T0)
            k("v_mov_b32 v%d, 0x7ffffff0" % V_T0)
            k("v_cndmask_b32 v%d, v%d, v%d, vcc" % (V_T0, V_T0, V_PW))
            k("buffer_store_dwordx4 %s, v%d, %s, s40 offen" % (vr(g, 4), V_T0, sr(S_WS, 4)))
    k.stamp(9, 181, S_STEP, SSTEP)
    k("s_add_u32 s%d, s%d, 1" % (S_STEP, S_STEP))
    kv_fetch(k, wait_flags=True)
    k.stamp(10, 181, S_STEP, SSTEP+1)
    nored = k.newlabel("nored")
    k("s_cmp_eq_u32 s%d, 255" % S_UNIT); k("s_cbranch_scc1 %s" % nored)
    k("s_mul_i32 s40, s%d, %d" % (S_SLOT, PART_SLOT)); k("s_add_u32 s40, s40, s%d" % S_PR)
    k("s_lshl_b32 s41, s%d, 13" % S_UNIT); k("s_add_u32 s40, s40, s41"); k("s_add_u32 s41, s40, 4096")
    loop, done = k.newlabel("red"), k.newlabel("redd")
    k.label(loop)
    for x in range(8):
        k("buffer_load_dwordx4 %s, v%d, %s, s%d offen offset:%d sc1" % (vr(AF + 4 * x, 4), V_L16, sr(S_WS, 4), 40 if x < 4 else 41, (x % 4) * 1024))
    k("s_waitcnt vmcnt(0)")
    k("v_mov_b32 v%d, s%d" % (V_T1, S_TAG))
    k("v_xor_b32 v%d, v%d, v%d" % (V_T0, V_T1, AF))
    for x in range(1, 8): k("v_bitop3_b32 v%d, v%d, v%d, v%d bitop3:0xf6" % (V_T0, V_T0, AF + 4 * x, V_T1))
    k("v_and_b32 v%d, 1, v%d" % (V_T0, V_T0))
    k("v_cmp_ne_u32 vcc, 0, v%d" % V_T0)
    k("s_cbranch_vccz %s" % done)
    k.spin_tail(loop, done)
    for x in range(8):
        k("v_mfma_f32_16x16x32_bf16 %s, %s, %s, %s" % (vr(AO, 4), vr(V_SELM, 4), vr(AF + 4 * x, 4), "0" if x == 0 else vr(AO, 4)))
    k("v_cvt_pk_bf16_f32 v%d, v%d, v%d" % (V_T2, AO, AO + 1)); k("v_cvt_pk_bf16_f32 v%d, v%d, v%d" % (V_T3, AO + 2, AO + 3))
    k("v_and_or_b32 v%d, v%d, -2, s%d" % (V_T2, V_T2, S_TAG))
    k("s_mul_i32 s40, s%d, %d" % (S_G, 4 * SL_SZ)); k("s_mul_i32 s41, s%d, %d" % (S_SLOT, SL_SZ)); k("s_add_u32 s40, s40, s41")
    k("s_lshl_b32 s41, s%d, 8" % S_UNIT); k("s_add_u32 s40, s40, s41"); k("s_add_u32 s40, s40, %d" % WS_SL)
    k("s_add_u32 s41, s40, %d" % (2 * SL_SZ))
    k("buffer_store_dwordx2 %s, v%d, %s, s41 offen sc1" % (vr(V_T2, 2), V_SLW, sr(S_WS, 4)))
    k("buffer_store_dwordx2 %s, v%d, %s, s40 offen" % (vr(V_T2, 2), V_SLW, sr(S_WS, 4)))
    k.stamp(11, 181, S_STEP, SSTEP+1)
    k.label(nored)
    k("s_mul_i32 s40, s%d, %d" % (S_SLOT, SL_SZ)); k("s_add_u32 s40, s40, %d" % WS_SL)
    loop, done = k.newlabel("gat"), k.newlabel("gatd")
    k.label(loop)
    for i in range(5):
        k("buffer_load_dwordx4 %s, v%d, %s, s40 offen offset:%d sc1" % (vr(AF + 4 * i, 4), V_NR, sr(S_WS, 4), i * 512))
    k("s_waitcnt vmcnt(0)")
    k("v_mov_b32 v%d, s%d" % (V_T1, S_TAG))
    k("v_xor_b32 v%d, v%d, v%d" % (V_T0, V_T1, AF))
    k("v_bitop3_b32 v%d, v%d, v%d, v%d bitop3:0xf6" % (V_T0, V_T0, AF + 2, V_T1))
    for i in range(1, 5):
        k("v_bitop3_b32 v%d, v%d, v%d, v%d bitop3:0xf6" % (V_T0, V_T0, AF + 4 * i, V_T1))
        k("v_bitop3_b32 v%d, v%d, v%d, v%d bitop3:0xf6" % (V_T0, V_T0, AF + 4 * i + 2, V_T1))
    k("v_and_b32 v%d, 1, v%d" % (V_T0, V_T0))
    k("v_cmp_ne_u32 vcc, 0, v%d" % V_T0)
    k("s_cbranch_vccz %s" % done)
    k.spin_tail(loop, done)
    k.stamp(12, 181, S_STEP, SSTEP+1)
    for i in range(5):
        k("v_mfma_f32_16x16x32_bf16 %s, %s, %s, 0" % (vr(KXF + 4 * i, 4), vr(V_SELN, 4), vr(AF + 4 * i, 4)))
    for i in range(5):
        k("v_cvt_pk_bf16_f32 v%d, v%d, v%d" % (V_T2, KXF + 4 * i, KXF + 4 * i + 1))
        k("v_cvt_pk_bf16_f32 v%d, v%d, v%d" % (V_T3, KXF + 4 * i + 2, KXF + 4 * i + 3))
        k("ds_write_b64 v%d, %s offset:%d" % (V_NW, vr(V_T2, 2), i * 512))
        if DUMP_MEM:
            k("s_mul_i32 s41, s%d, 10240" % S_STEP); k("s_add_u32 s41, s41, %d" % (WS_MEMDBG + i * 512))
            k.lin(V_T0, lambda t: (16 * ((t >> 5) & 1) + (t & 15)) * 16 + ((t >> 4) & 1) * 8 + (t >> 6) * 2560, V_T1)
            k("buffer_store_dwordx2 %s, v%d, %s, s41 offen" % (vr(V_T2, 2), V_T0, sr(S_WS, 4)))
            k("s_waitcnt vmcnt(0)")
    k("s_waitcnt vmcnt(0) lgkmcnt(0)")
    k.stamp(13, 181, S_STEP, SSTEP+1)
    k("s_branch C_step")
    k.label("C_done")
    k.stamp_rt(40, 181)
    k.stamp_dump(181, V_T0)

def kv_fetch(k, wait_flags):
    for w, fl, base, ldsoff, sub in ((2, F_K, WS_KX, 0, None), (3, F_V, WS_VX, 4096, None)):
        sk = k.newlabel("kvf")
        k("s_cmp_lg_u32 s%d, %d" % (S_WAVE, w)); k("s_cbranch_scc1 %s" % sk)
        k("s_lshl_b32 s40, s%d, 7" % S_HEAD); k("s_add_u32 s40, s40, %d" % (WS_FLAGS + fl * FL_STRIDE))
        k("v_mov_b32 v%d, s40" % V_T0)
        k("s_add_u32 s42, s%d, 1" % S_STEP)
        k("s_min_u32 s42, s42, 64")
        k.poll_ge(S_WS, V_T0, V_T1, "s42")
        k("s_min_u32 s43, s%d, 63" % S_STEP)
        k("s_lshl_b32 s40, s43, 5"); k("s_add_u32 s40, s40, s%d" % S_HEAD); k("s_lshl_b32 s40, s40, 13")
        k("s_add_u32 s40, s40, %d" % base)
        k("s_mov_b32 m0, %d" % (L_KXV + ldsoff))
        if w == 2:
            k("s_lshl_b32 s41, s%d, 11" % S_HALF); k("s_add_u32 s40, s40, s41")
            k("buffer_load_dwordx4 v%d, %s, s40 offen sc1 lds" % (V_L16, sr(S_WS, 4)))
            k("buffer_load_dwordx4 v%d, %s, s40 offen offset:1024 sc1 lds" % (V_L16, sr(S_WS, 4)))
            k("s_add_u32 s40, s40, 4096"); k("s_mov_b32 m0, %d" % (L_KXV + 2048))
            k("buffer_load_dwordx4 v%d, %s, s40 offen sc1 lds" % (V_L16, sr(S_WS, 4)))
            k("buffer_load_dwordx4 v%d, %s, s40 offen offset:1024 sc1 lds" % (V_L16, sr(S_WS, 4)))
        else:
            k("s_lshl_b32 s41, s%d, 12" % S_HALF); k("s_add_u32 s40, s40, s41")
            for i in range(4):
                k("buffer_load_dwordx4 v%d, %s, s40 offen offset:%d sc1 lds" % (V_L16, sr(S_WS, 4), i * 1024))
        k.label(sk)
```

```python
from asmlib import *
from layout import *

S_WS, S_DBG = 4, 8
S_R0, S_R1, S_R2, S_R3, S_R4 = 12, 16, 20, 24, 28
S_XCC, S_TK, S_WAVE, S_SPIN = 32, 33, 34, 35
S_T0 = 36
S_P = 44
SPIN_LIMIT = 300000

class G(K):
    def srd(self, reg, name):
        self("s_load_dwordx2 %s, s[0:1], %d" % (sr(reg, 2), ARG[name]))
        self("s_mov_b32 s%d, 0x%x" % (reg + 2, SIZE[name]))
        self("s_mov_b32 s%d, 0x00020000" % (reg + 3))
    def srd_wait(self):
        self("s_waitcnt lgkmcnt(0)")
    def lin(self, dst, fn, tmp, st=S_T0, n=256):
        f0 = fn(0)
        co = [fn(1 << b) - f0 for b in range(8)]
        for t in range(n):
            assert fn(t) == f0 + sum(co[b] for b in range(8) if t >> b & 1), "not additive at %d" % t
        fields, b = [], 0
        while b < 8:
            if co[b] == 0: b += 1; continue
            e = b
            while e + 1 < 8 and co[e + 1] == 2 * co[e]: e += 1
            fields.append((b, e - b + 1, co[b])); b = e + 1
        first = True
        for lo, w, c in fields:
            assert -(1 << 23) <= c < (1 << 23)
            if lo + w == 8 and n == 256: self("v_lshrrev_b32 v%d, %d, v0" % (tmp, lo))
            elif lo == 0: self("v_and_b32 v%d, %d, v0" % (tmp, (1 << w) - 1))
            else: self("v_bfe_u32 v%d, v0, %d, %d" % (tmp, lo, w))
            if first:
                self("v_mov_b32 v%d, 0x%x" % (dst, f0 & 0xffffffff)); first = False
            if -16 <= c <= 64:
                self("v_mad_i32_i24 v%d, v%d, %d, v%d" % (dst, tmp, c, dst))
            else:
                self("s_mov_b32 s%d, 0x%x" % (st, c & 0xffffffff))
                self("v_mad_i32_i24 v%d, v%d, s%d, v%d" % (dst, tmp, st, dst))
        if first: self("v_mov_b32 v%d, 0x%x" % (dst, f0 & 0xffffffff))
    def spin_tail(self, loop, done):
        self("s_add_u32 s%d, s%d, 1" % (S_SPIN, S_SPIN))
        self("s_cmp_lt_u32 s%d, %d" % (S_SPIN, SPIN_LIMIT))
        self("s_cbranch_scc1 %s" % loop)
        self.label(done)
    def poll_ge(self, srd, voff, vtmp, need, soff="0", sleep=0):
        loop, done = self.newlabel("poll"), self.newlabel("polled")
        self.label(loop)
        self("buffer_load_dword v%d, v%d, %s, %s offen sc1" % (vtmp, voff, sr(srd, 4), soff))
        self("s_waitcnt vmcnt(0)")
        self("v_cmp_gt_u32 vcc, %s, v%d" % (need, vtmp))
        self("s_cbranch_vccz %s" % done)
        if sleep: self("s_sleep %d" % sleep)
        self.spin_tail(loop, done)
    def flag_addr(self, dst, base, n, tmp):
        self("v_and_b32 v%d, 63, v0" % tmp)
        self("v_min_u32 v%d, %d, v%d" % (tmp, n - 1, tmp))
        self("v_lshlrev_b32 v%d, 7, v%d" % (tmp, tmp))
        self("v_add_u32 v%d, 0x%x, v%d" % (dst, WS_FLAGS + base * FL_STRIDE, tmp))
    def publish_word(self, soff_reg, val, vt0, vt1):
        self("v_and_b32 v%d, 63, v0" % vt0)
        self("v_cmp_eq_u32 vcc, 0, v%d" % vt0)
        self("v_mov_b32 v%d, 0x7ffffff0" % vt1)
        self("v_cndmask_b32 v%d, v%d, 0, vcc" % (vt0, vt1))
        self("v_mov_b32 v%d, %s" % (vt1, val))
        self("buffer_store_dword v%d, v%d, %s, s%d offen sc1" % (vt1, vt0, sr(S_WS, 4), soff_reg))
    def atomic_inc_dbg(self, off, vt0, vt1):
        self("v_and_b32 v%d, 63, v0" % vt0)
        self("v_cmp_eq_u32 vcc, 0, v%d" % vt0)
        self("v_mov_b32 v%d, 0x7ffffff0" % vt1)
        self("v_mov_b32 v%d, %d" % (vt0, off))
        self("v_cndmask_b32 v%d, v%d, v%d, vcc" % (vt0, vt1, vt0))
        self("v_mov_b32 v%d, 1" % vt1)
        self("buffer_atomic_add v%d, v%d, %s, 0 offen" % (vt1, vt0, sr(S_DBG, 4)))
    def poll_dbg(self, off, need, vt0, vt1):
        self("v_mov_b32 v%d, %d" % (vt0, off))
        self.poll_ge(S_DBG, vt0, vt1, need)
    def xsum16_32(self, regs, t):
        for op in ("v_permlane16_swap_b32", "v_permlane32_swap_b32"):
            for r in regs:
                self("v_mov_b32 v%d, v%d" % (t, r))
                self("%s v%d, v%d" % (op, r, t))
                self("v_add_f32 v%d, v%d, v%d" % (r, r, t))
    STAMPS = bool(int(__import__("os").environ.get("STAMPS", "0")))
    def stamp(self, idx, vst, cond_reg=None, cond_val=None):
        if not self.STAMPS: return
        sk = self.newlabel("stamp")
        if cond_reg is not None:
            self("s_cmp_lg_u32 s%d, %d" % (cond_reg, cond_val)); self("s_cbranch_scc1 %s" % sk)
        self("s_memtime s[92:93]"); self("s_waitcnt lgkmcnt(0)")
        self("v_writelane_b32 v%d, s92, %d" % (vst, idx))
        self.label(sk)
    def stamp_rt(self, idx, vst):
        if not self.STAMPS: return
        self("s_memrealtime s[92:93]"); self("s_waitcnt lgkmcnt(0)")
        self("v_writelane_b32 v%d, s92, %d" % (vst, idx))
    def stamp_dump(self, vst, vt):
        if not self.STAMPS: return
        self("s_lshl_b32 s92, s%d, 5" % S_XCC); self("s_add_u32 s92, s92, s%d" % S_TK)
        self("s_lshl_b32 s92, s92, 2"); self("s_add_u32 s92, s92, s%d" % S_WAVE); self("s_lshl_b32 s92, s92, 8")
        self("s_add_u32 s92, s92, %d" % WS_STAMP)
        self("v_and_b32 v%d, 63, v0" % vt); self("v_lshlrev_b32 v%d, 2, v%d" % (vt, vt))
        self("buffer_store_dword v%d, v%d, %s, s92 offen" % (vst, vt, sr(S_WS, 4)))
        self("s_waitcnt vmcnt(0)")
```

```python
S, D, H, DH, M, SEG, NSEG, F = 2048, 640, 32, 128, 8, 32, 64, 1728
KB = 1024
FL_STRIDE = 128
F_LN1, F_K, F_V, F_KVM, F_O, F_OP, F_LN2, F_G1 = 0, 128, 160, 192, 256, 288, 328, 360
N_FLAGS = 512
WS_FLAGS = 0
WS_MOD   = 64 * KB
WS_SC    = 128 * KB
WS_SL    = WS_SC + 64 * 2 * 3 * KB
SL_SZ    = 640 * 16
WS_PART  = 1024 * KB
PART_SLOT = 40 * 32 * 256
WS_H     = 4096 * KB
H_SEG    = 40 * KB
WS_U     = WS_H + NSEG * H_SEG
WS_H2    = 10 * KB * KB
WS_X1    = 14 * KB * KB
WS_KX    = 32 * KB * KB
WS_VX    = 48 * KB * KB
WS_O     = 64 * KB * KB
WS_KM    = 80 * KB * KB
WS_VM    = 96 * KB * KB
WS_OPP   = 112 * KB * KB
WS_MEMDBG = 144 * KB * KB
WS_STAMP = 150 * KB * KB
WS_BYTES = 268435456
assert WS_SL + 2 * 2 * 2 * SL_SZ <= WS_PART
assert WS_PART + 2 * 2 * PART_SLOT <= WS_H
assert WS_U + 40 * 54 * KB <= WS_H2
assert WS_H2 + S * D * 2 <= WS_X1 and WS_X1 + S * D * 4 <= WS_KX
assert WS_OPP + NSEG * 4 * 32 * 640 * 4 <= WS_MEMDBG
def DBG_TICKET(x): return (x & 3) * 4 + (x >> 2) * 128
DBG_MODA, DBG_MODB, DBG_CHI = 32, 128 + 32, 64
N_MODA, N_MODB = 40, 80
ARG = dict(x=0, mem0=8, wq=16, wk=24, wv=32, wo=40, seglen=48, bx=56, w1=64, b1=72, w2=80, b2=88, c=96, wmod=104, out=112, dbg=120, ws=128)
SIZE = dict(x=S * D * 2, mem0=M * D * 2, wq=D * H * DH * 2, wk=D * H * DH * 2, wv=D * H * DH * 2, wo=H * DH * D * 2,
            w1=S * F * 2, b1=F * 2, w2=F * S * 2, b2=S * 2, c=D * 2, wmod=D * 6 * D * 2, out=S * D * 2, dbg=256, ws=WS_BYTES)
```

```python
from common import *

def prologue(k):
    k("s_cmp_ge_u32 s2, 256")
    k("s_cbranch_scc1 L_end")
    k.srd(S_WS, "ws"); k.srd(S_DBG, "dbg")
    k("s_getreg_b32 s%d, hwreg(HW_REG_XCC_ID)" % S_XCC)
    k("s_and_b32 s%d, s%d, 7" % (S_XCC, S_XCC))
    k("s_mov_b32 s%d, 0" % S_SPIN)
    k("v_lshrrev_b32 v1, 6, v0")
    k("v_readfirstlane_b32 s%d, v1" % S_WAVE)
    k.srd_wait()
    k("s_cmp_lg_u32 s%d, 0" % S_WAVE)
    k("s_cbranch_scc1 L_tk_wait")
    k("s_and_b32 s36, s%d, 3" % S_XCC)
    k("s_lshl_b32 s36, s36, 2")
    k("s_lshr_b32 s37, s%d, 2" % S_XCC)
    k("s_lshl_b32 s37, s37, 7")
    k("s_add_u32 s36, s36, s37")
    k("v_cmp_eq_u32 vcc, 0, v0")
    k("v_mov_b32 v2, 0x7ffffff0")
    k("v_mov_b32 v3, s36")
    k("v_cndmask_b32 v2, v2, v3, vcc")
    k("v_mov_b32 v3, 1")
    k("buffer_atomic_add v3, v2, %s, 0 offen sc0" % sr(S_DBG, 4))
    k("s_waitcnt vmcnt(0)")
    k("v_mov_b32 v2, 0")
    k("v_readfirstlane_b32 s36, v3")
    k("v_mov_b32 v3, s36")
    k("ds_write_b32 v2, v3")
    k("s_waitcnt lgkmcnt(0)")
    k.label("L_tk_wait")
    k("s_barrier")
    k("v_mov_b32 v2, 0")
    k("ds_read_b32 v3, v2")
    k("s_waitcnt lgkmcnt(0)")
    k("v_readfirstlane_b32 s%d, v3" % S_TK)
    k("s_and_b32 s%d, s%d, 31" % (S_TK, S_TK))
    k("s_barrier")

MOD_LDS = 163840 - 1024

def mod_issue(k, su, vb):
    k.srd(S_R0, "wmod"); k.srd(S_R1, "c")
    k.lin(vb + 50, lambda t: (160 * (t >> 6) + ((t & 63) >> 2)) * 7680 + (t & 3) * 16, vb + 52)
    k.lin(vb + 51, lambda t: (160 * (t >> 6) + ((t & 63) >> 2)) * 2, vb + 52)
    k("s_lshl_b32 s40, s%d, 6" % su)
    k.srd_wait()
    for i in range(10):
        k("buffer_load_ushort v%d, v%d, %s, 0 offen offset:%d" % (vb + 40 + i, vb + 51, sr(S_R1, 4), i * 32))
    for i in range(10):
        k("buffer_load_dwordx4 %s, v%d, %s, s40 offen" % (vr(vb + 4 * i, 4), vb + 50, sr(S_R0, 4)))
        if i < 9: k("s_add_u32 s40, s40, %d" % (16 * 7680))
    return k.vm

def mod_finish(k, su, vb, tok, dbg_counter):
    acc = vb + 54
    t0, t1, t2 = vb + 62, vb + 63, vb + 64
    k.wait_vm(tok)
    for i in range(8): k("v_mov_b32 v%d, 0" % (acc + i))
    for i in range(10):
        c = vb + 40 + i
        k("v_lshlrev_b32 v%d, 16, v%d" % (c, c))
        k("v_mul_f32 v%d, 0xbfb8aa3b, v%d" % (t0, c))
        k("v_exp_f32 v%d, v%d" % (t0, t0))
        k("v_add_f32 v%d, 1.0, v%d" % (t0, t0))
        k("v_rcp_f32 v%d, v%d" % (t0, t0))
        k("v_mul_f32 v%d, v%d, v%d" % (c, c, t0))
        for d in range(4):
            w = vb + 4 * i + d
            k("v_lshlrev_b32 v%d, 16, v%d" % (t1, w))
            k("v_and_b32 v%d, 0xffff0000, v%d" % (t2, w))
            k("v_fmac_f32 v%d, v%d, v%d" % (acc + 2 * d, c, t1))
            k("v_fmac_f32 v%d, v%d, v%d" % (acc + 2 * d + 1, c, t2))
    for rot in (4, 8):
        for i in range(8):
            k("v_add_f32_dpp v%d, v%d, v%d row_ror:%d row_mask:0xf bank_mask:0xf" % (acc + i, acc + i, acc + i, rot))
    k.xsum16_32([acc + i for i in range(8)], t0)
    k.lin(t0, lambda t: MOD_LDS + (t >> 6) * 128 + (t & 3) * 32, t1)
    k("ds_write_b128 v%d, %s" % (t0, vr(acc, 4)))
    k("ds_write_b128 v%d, %s offset:16" % (t0, vr(acc + 4, 4)))
    k("s_waitcnt lgkmcnt(0)")
    k("s_barrier")
    k.lin(t0, lambda t: MOD_LDS + (t & 31) * 4, t1)
    for w in range(4): k("ds_read_b32 v%d, v%d offset:%d" % (acc + w, t0, w * 128))
    k("s_waitcnt lgkmcnt(0)")
    k("v_add_f32 v%d, v%d, v%d" % (acc, acc, acc + 1))
    k("v_add_f32 v%d, v%d, v%d" % (acc + 2, acc + 2, acc + 3))
    k("v_add_f32 v%d, v%d, v%d" % (acc, acc, acc + 2))
    skip = k.newlabel("modskip")
    k("s_cmp_lg_u32 s%d, 0" % S_WAVE)
    k("s_cbranch_scc1 %s" % skip)
    k.lin(t0, lambda t: WS_MOD + (t & 31) * 4, t1)
    k("s_lshl_b32 s40, s%d, 7" % su)
    k("buffer_store_dword v%d, v%d, %s, s40 offen sc1" % (acc, t0, sr(S_WS, 4)))
    k("s_waitcnt vmcnt(0)")
    k.atomic_inc_dbg(dbg_counter, t0, t1)
    k.label(skip)
    k("s_barrier")

def zero_flags(k, su, vt):
    for i in range(4): k("v_mov_b32 v%d, 0" % (vt + i))
    k.lin(vt + 4, lambda t: WS_FLAGS + t * 16, vt + 5)
    k("s_lshl_b32 s40, s%d, 12" % su)
    k("buffer_store_dwordx4 %s, v%d, %s, s40 offen sc1" % (vr(vt, 4), vt + 4, sr(S_WS, 4)))

def ln1(k, stile):
    X = 8
    Fv = 32
    CA, SA = 72, 112
    t0, t1, t2, t3, addr = 4, 5, 6, 7, 28
    LDS = MOD_LDS
    k.srd(S_R0, "x")
    k.lin(addr, lambda t: (t & 15) * 1280 + ((t >> 4) & 3) * 16 + (t >> 6) * 5 * 64, t0)
    k("s_mul_i32 s40, s%d, %d" % (stile, 16 * 1280))
    k.srd_wait()
    for i in range(5):
        k("buffer_load_dwordx4 %s, v%d, %s, s40 offen offset:%d" % (vr(X + 4 * i, 4), addr, sr(S_R0, 4), i * 64))
    k("s_waitcnt vmcnt(0)")
    for i in range(20):
        k("v_lshlrev_b32 v%d, 16, v%d" % (Fv + 2 * i, X + i))
        k("v_and_b32 v%d, 0xffff0000, v%d" % (Fv + 2 * i + 1, X + i))
    def reduce_rows(slot):
        k.xsum16_32([t0], t1)
        k.lin(t1, lambda t: LDS + slot * 256 + (t >> 6) * 64 + (t & 15) * 4, t2)
        k("ds_write_b32 v%d, v%d" % (t1, t0))
        k("s_waitcnt lgkmcnt(0)")
        k("s_barrier")
        k.lin(t1, lambda t: LDS + slot * 256 + (t & 15) * 4, t2)
        k("ds_read_b32 v%d, v%d" % (t0, t1))
        k("ds_read_b32 v%d, v%d offset:64" % (t2, t1))
        k("ds_read_b32 v%d, v%d offset:128" % (t3, t1))
        k("ds_read_b32 v%d, v%d offset:192" % (t1, t1))
        k("s_waitcnt lgkmcnt(0)")
        k("v_add_f32 v%d, v%d, v%d" % (t0, t0, t2))
        k("v_add_f32 v%d, v%d, v%d" % (t1, t1, t3))
        k("v_add_f32 v%d, v%d, v%d" % (t0, t0, t1))
    k("v_add_f32 v%d, v%d, v%d" % (t0, Fv, Fv + 1))
    for i in range(2, 40): k("v_add_f32 v%d, v%d, v%d" % (t0, t0, Fv + i))
    reduce_rows(0)
    k("v_mul_f32 v%d, 0x%08x, v%d" % (t0, f32bits(1.0 / 640), t0))
    for i in range(40): k("v_sub_f32 v%d, v%d, v%d" % (Fv + i, Fv + i, t0))
    k("v_mul_f32 v%d, v%d, v%d" % (t0, Fv, Fv))
    for i in range(1, 40): k("v_fmac_f32 v%d, v%d, v%d" % (t0, Fv + i, Fv + i))
    reduce_rows(1)
    k("v_mov_b32 v%d, 0x%08x" % (t1, f32bits(1e-5)))
    k("v_fmac_f32 v%d, 0x%08x, v%d" % (t1, f32bits(1.0 / 640), t0))
    k("v_rsq_f32 v%d, v%d" % (t1, t1))
    for i in range(40): k("v_mul_f32 v%d, v%d, v%d" % (Fv + i, Fv + i, t1))
    k.poll_dbg(DBG_MODA, N_MODA, t0, t2)
    k.lin(addr, lambda t: WS_MOD + (((t >> 4) & 3) * 8 + (t >> 6) * 160) * 4, t0)
    for i in range(5):
        for hh in range(2):
            k("buffer_load_dwordx4 %s, v%d, %s, 0 offen offset:%d sc1" % (vr(SA + 8 * i + 4 * hh, 4), addr, sr(S_WS, 4), i * 128 + hh * 16))
            k("buffer_load_dwordx4 %s, v%d, %s, 0 offen offset:%d sc1" % (vr(CA + 8 * i + 4 * hh, 4), addr, sr(S_WS, 4), 2560 + i * 128 + hh * 16))
    k("s_waitcnt vmcnt(0)")
    for i in range(40):
        k("v_fma_f32 v%d, v%d, v%d, v%d" % (CA + i, Fv + i, CA + i, Fv + i))
        k("v_add_f32 v%d, v%d, v%d" % (CA + i, CA + i, SA + i))
    for i in range(20): k("v_cvt_pk_bf16_f32 v%d, v%d, v%d" % (X + i, CA + 2 * i, CA + 2 * i + 1))
    k.lin(addr, lambda t: WS_H + (t & 63) * 16 + (t >> 6) * 5 * 1024, t0)
    k("s_mul_i32 s40, s%d, %d" % (stile, 20 * 1024))
    for i in range(5):
        if i == 4: k("s_add_u32 s40, s40, 4096")
        k("buffer_store_dwordx4 %s, v%d, %s, s40 offen offset:%d sc1" % (vr(X + 4 * i, 4), addr, sr(S_WS, 4), (i % 4) * 1024))
    k("s_waitcnt vmcnt(0)")
    k("s_barrier")
    skip = k.newlabel("ln1skip")
    k("s_cmp_lg_u32 s%d, 0" % S_WAVE)
    k("s_cbranch_scc1 %s" % skip)
    k("s_lshl_b32 s40, s%d, 7" % stile)
    k("s_add_u32 s40, s40, %d" % (WS_FLAGS + F_LN1 * FL_STRIDE))
    k.publish_word(40, "1", t0, t1)
    k.label(skip)

import struct
def f32bits(x): return struct.unpack("<I", struct.pack("<f", x))[0]
```

```python
from common import *

def w128_issue(k, srd, shead, chunks, va, vb, vt):
    k.lin(va, lambda t: ((t & 63) >> 4) * 8192, vt)
    k.lin(vb, lambda t: (t & 15) * 16, vt)
    k.lin(vt, lambda t: ((t & 63) >> 4) * 32, vt + 1)
    k("v_xor_b32 v%d, v%d, v%d" % (vb, vb, vt))
    k("v_add_u32 v%d, v%d, v%d" % (va, va, vb))
    k("v_xor_b32 v%d, 128, v%d" % (vb, va))
    for c in chunks: w128_chunk(k, srd, shead, c, va, vb)

def w128_chunk(k, srd, shead, c, va, vb):
    k("s_lshl_b32 s41, s%d, 8" % shead)
    k("s_mul_i32 s42, s%d, %d" % (S_WAVE, 32 * 8192))
    k("s_add_u32 s41, s41, s42")
    k("s_add_u32 s41, s41, %d" % (c * 128 * 8192))
    k("s_lshl_b32 s42, s%d, 13" % S_WAVE)
    k("s_add_u32 s42, s42, %d" % ((c % 4) * 32768))
    for i in range(8):
        k("s_mov_b32 m0, s42")
        k("buffer_load_dwordx4 v%d, %s, s41 offen lds" % (vb if (i >> 1) & 1 else va, sr(srd, 4)))
        if i < 7:
            k("s_add_u32 s41, s41, %d" % (4 * 8192))
            k("s_add_u32 s42, s42, 1024")

def w128_addr(k, ra, vt):
    k.lin(ra, lambda t: 4 * (t >> 6) + ((t & 3) >> 1), vt)
    k.lin(ra + 1, lambda t: 2 * ((t >> 2) & 3) + 8 * ((t >> 4) & 1), vt)
    k("v_xor_b32 v%d, v%d, v%d" % (ra, ra, ra + 1))
    k("v_lshlrev_b32 v%d, 4, v%d" % (ra, ra))
    k.lin(ra + 1, lambda t: (8 * ((t >> 4) & 3) + ((t >> 2) & 3)) * 256 + (t & 1) * 8, vt)
    k("v_add_u32 v%d, v%d, v%d" % (ra, ra, ra + 1))
    k("v_xor_b32 v%d, 32, v%d" % (ra + 1, ra))
    k("v_add_u32 v%d, 0x10000, v%d" % (ra + 2, ra))
    k("v_add_u32 v%d, 0x10000, v%d" % (ra + 3, ra + 1))

def w128_read(k, c, ra, wbase):
    for mm in range(4):
        m = 4 * c + mm
        for e0 in range(2):
            for t in range(2):
                buf = c % 4
                off = (buf % 2) * 32768 + mm * 8192 + t * 1024
                k("ds_read_b64_tr_b16 %s, v%d offset:%d" % (ur(wbase + (e0 * 20 + m) * 4 + 2 * t, 2), ra + e0 + 2 * (buf // 2), off))

def load_w128(k, srd, shead, wbase, vt, first_tok_cb=None):
    va, vb, ra = vt, vt + 1, vt + 2
    w128_issue(k, srd, shead, [0, 1, 2, 3], va, vb, vt + 6)
    if first_tok_cb: first_tok_cb()
    w128_addr(k, ra, vt + 6)
    k("s_waitcnt vmcnt(24)"); k("s_barrier")
    w128_read(k, 0, ra, wbase)
    k("s_waitcnt lgkmcnt(0)"); k("s_barrier")
    w128_chunk(k, srd, shead, 4, va, vb)
    for c, n in ((1, 24), (2, 16), (3, 8), (4, 0)):
        k("s_waitcnt vmcnt(%d)" % n); k("s_barrier")
        w128_read(k, c, ra, wbase)
    k("s_waitcnt lgkmcnt(0)"); k("s_barrier")

def h_dma(k, sseg, sbuf, va):
    k("s_mul_i32 s41, s%d, %d" % (sseg, H_SEG))
    k("s_mul_i32 s42, s%d, 10240" % S_WAVE)
    k("s_add_u32 s41, s41, s42")
    k("s_add_u32 s41, s41, %d" % WS_H)
    k("s_add_u32 s42, s42, s%d" % sbuf)
    for g, n in ((0, 4), (1, 4), (2, 2)):
        k("s_mov_b32 m0, s42")
        for i in range(n):
            k("buffer_load_dwordx4 v%d, %s, s41 offen offset:%d sc1 lds" % (va, sr(S_WS, 4), i * 1024))
        if g < 2:
            k("s_add_u32 s41, s41, 4096"); k("s_add_u32 s42, s42, 4096")

def proj_tile(k, wbase, acc, fr, rd, weights_as_a, nbuf=6):
    order = [(m, T) for m in range(20) for T in range(2)]
    toks = {}
    def rdfrag(i):
        m, T = order[i]
        k("ds_read_b128 %s, v%d offset:%d" % (vr(fr + 4 * (i % nbuf), 4), rd, (T * 20 + m) * 1024))
        toks[i] = k.lg
    for i in range(nbuf - 1): rdfrag(i)
    for i, (m, T) in enumerate(order):
        if i + nbuf - 1 < len(order): rdfrag(i + nbuf - 1)
        k.wait_lg(toks[i])
        f = vr(fr + 4 * (i % nbuf), 4)
        for e0 in range(2):
            w = ur(wbase + (e0 * 20 + m) * 4, 4)
            d = vr(acc + (e0 * 2 + T) * 4, 4)
            c = "0" if m == 0 else d
            if weights_as_a: k("v_mfma_f32_16x16x32_bf16 %s, %s, %s, %s" % (d, w, f, c))
            else: k("v_mfma_f32_16x16x32_bf16 %s, %s, %s, %s" % (d, f, w, c))

def kv_role(k, is_k, name):
    WB = 256
    acc, fr, G0 = 32, 48, 80
    rd, va, st, t0, t1 = 8, 9, 10, 11, 12
    sseg, sbuf, snext = S_P, S_P + 1, S_P + 2
    k.flag_addr(t0, F_LN1, 64, t1)
    k.poll_ge(S_WS, t0, t1, "1")
    k.flag_addr(t0, F_LN1 + 64, 64, t1)
    k.poll_ge(S_WS, t0, t1, "1")
    k.lin(va, lambda t: (t & 63) * 16, t0)
    k.lin(st, lambda t: (t & 63) * 16 + (t >> 6) * (1024 if is_k else 2048), t0)
    k("s_mov_b32 s%d, 0" % sseg)
    k("s_mov_b32 s%d, 0" % sbuf)
    h_dma(k, sseg, sbuf, va)
    loop = name + "_loop"
    k.label(loop)
    k("s_waitcnt vmcnt(0)")
    k("s_barrier")
    sk = k.newlabel("pub")
    k("s_cmp_lg_u32 s%d, 0" % S_WAVE)
    k("s_cbranch_scc1 %s" % sk)
    k("s_lshl_b32 s40, s%d, 7" % S_TK)
    k("s_add_u32 s40, s40, %d" % (WS_FLAGS + (F_K if is_k else F_V) * FL_STRIDE))
    k.publish_word(40, "s%d" % sseg, t0, t1)
    k.label(sk)
    k("v_add_u32 v%d, s%d, v%d" % (rd, sbuf, va))
    k("s_xor_b32 s%d, s%d, %d" % (sbuf, sbuf, 40960))
    nx = k.newlabel("nonext")
    k("s_add_u32 s%d, s%d, 1" % (snext, sseg))
    k("s_cmp_ge_u32 s%d, 64" % snext)
    k("s_cbranch_scc1 %s" % nx)
    h_dma(k, snext, sbuf, va)
    k.label(nx)
    proj_tile(k, WB, acc, fr, rd, is_k)
    A = lambda e0, T, r: acc + (e0 * 2 + T) * 4 + r
    k("s_lshl_b32 s40, s%d, 5" % sseg)
    k("s_add_u32 s40, s40, s%d" % S_TK)
    k("s_lshl_b32 s40, s40, 13")
    k("s_add_u32 s40, s40, %d" % (WS_KX if is_k else WS_VX))
    for x in range(2):
        g = G0 + 4 * x
        if is_k:
            src = [(A(0, x, 0), A(0, x, 1)), (A(0, x, 2), A(0, x, 3)), (A(1, x, 0), A(1, x, 1)), (A(1, x, 2), A(1, x, 3))]
            off = x * 4096
        else:
            src = [(A(x, 0, 0), A(x, 0, 1)), (A(x, 0, 2), A(x, 0, 3)), (A(x, 1, 0), A(x, 1, 1)), (A(x, 1, 2), A(x, 1, 3))]
            off = x * 1024
        for d, (p, q) in enumerate(src): k("v_cvt_pk_bf16_f32 v%d, v%d, v%d" % (g + d, p, q))
        if off > 4095:
            k("s_add_u32 s40, s40, %d" % off); off = 0
        k("buffer_store_dwordx4 %s, v%d, %s, s40 offen offset:%d sc1" % (vr(g, 4), st, sr(S_WS, 4), off))
    k("s_add_u32 s%d, s%d, 1" % (sseg, sseg))
    k("s_cmp_lt_u32 s%d, 64" % sseg)
    k("s_cbranch_scc1 %s" % loop)
    k("s_waitcnt vmcnt(0)")
    k("s_barrier")
    sk = k.newlabel("pub")
    k("s_cmp_lg_u32 s%d, 0" % S_WAVE)
    k("s_cbranch_scc1 %s" % sk)
    k("s_lshl_b32 s40, s%d, 7" % S_TK)
    k("s_add_u32 s40, s40, %d" % (WS_FLAGS + (F_K if is_k else F_V) * FL_STRIDE))
    k.publish_word(40, "64", t0, t1)
    k.label(sk)
```

```python
from common import *
from pro import f32bits
import math

def rows128_setup(k, stride, va, ra, vt, region):
    k.lin(va, lambda t: (t & 7) * 16, vt)
    k.lin(ra, lambda t: ((t & 63) >> 4) * 32, vt)
    k("v_xor_b32 v%d, v%d, v%d" % (va, va, ra))
    k.lin(ra, lambda t: ((t & 63) >> 3) * stride, vt)
    k("v_add_u32 v%d, v%d, v%d" % (va, va, ra))
    k.lin(ra, lambda t: (t >> 6) * region + (4 * ((t >> 4) & 3) + ((t >> 2) & 3)) * 128 + ((t >> 1) & 1) * 16 + (t & 1) * 8, vt)
    k.lin(ra + 1, lambda t: (2 * ((t >> 4) & 1) + ((t >> 3) & 1)) * 32, vt)
    k("v_add_u32 v%d, v%d, v%d" % (ra, ra, ra + 1))
    for N in range(1, 4): k("v_xor_b32 v%d, %d, v%d" % (ra + N, N * 32, ra))

def rows128_issue(k, srd, ssrc, stride, nks, va, region):
    k("s_mul_i32 s42, s%d, %d" % (S_WAVE, region))
    for i in range(nks * 4):
        k("s_mov_b32 m0, s42")
        k("buffer_load_dwordx4 v%d, %s, s%d offen lds" % (va, sr(srd, 4), ssrc))
        k("s_add_u32 s%d, s%d, %d" % (ssrc, ssrc, 8 * stride))
        k("s_add_u32 s42, s42, 1024")

def rows128_read(k, nks, ra, dest):
    for i in range(nks):
        for N in range(4):
            for t in range(2):
                k("ds_read_b64_tr_b16 %s, v%d offset:%d" % (ur(dest(N, i) + 2 * t, 2), ra + N, i * 4096 + t * 2048))

def op_role(k, sks, sns):
    WB = 256
    BF, acc = 32, 96
    va, ra, t0, t1, vl, vrd, vst, vflag = 8, 9, 13, 14, 15, 16, 17, 18
    sseg = S_P
    k.srd(S_R2, "wo")
    rows128_setup(k, 1280, va, ra, t0, 32768)
    k("s_lshl_b32 s41, s%d, 3" % sks); k("s_lshl_b32 s40, s%d, 1" % S_WAVE); k("s_add_u32 s41, s41, s40")
    k("s_mul_i32 s41, s41, %d" % (128 * 1280)); k("s_lshl_b32 s40, s%d, 7" % sns); k("s_add_u32 s41, s41, s40")
    k.srd_wait()
    rows128_issue(k, S_R2, 41, 1280, 8, va, 32768)
    k("s_waitcnt vmcnt(0)")
    rows128_read(k, 8, ra, lambda N, i: WB + (N * 8 + i) * 4)
    k("s_waitcnt lgkmcnt(0)"); k("s_barrier")
    k.lin(vl, lambda t: (t & 63) * 16 + (t >> 6) * 2 * 4096, t0)
    k.lin(vrd, lambda t: (t & 63) * 16 + (t >> 6) * 2048, t0)
    k.lin(vst, lambda t: (t & 15) * 2560 + ((t >> 4) & 3) * 16 + (t >> 6) * 64, t0)
    k("s_lshl_b32 s40, s%d, 3" % sks)
    k.flag_addr(vflag, F_O, 8, t0)
    k("s_lshl_b32 s40, s40, 7"); k("v_add_u32 v%d, s40, v%d" % (vflag, vflag))
    k.poll_dbg(DBG_MODA, N_MODA, t0, t1)
    k("s_mov_b32 s%d, 0" % sseg)
    k.label("OP_loop")
    k("s_add_u32 s43, s%d, 1" % sseg)
    k.poll_ge(S_WS, vflag, t1, "s43", sleep=2)
    for T in range(2):
        k("s_lshl_b32 s40, s%d, 1" % sseg); k("s_add_u32 s40, s40, %d" % T); k("s_lshl_b32 s40, s40, 5")
        k("s_lshl_b32 s41, s%d, 3" % sks); k("s_add_u32 s40, s40, s41"); k("s_lshl_b32 s40, s40, 12"); k("s_add_u32 s40, s40, %d" % WS_O)
        for i in range(8):
            if i == 4: k("s_add_u32 s40, s40, 4096")
            k("buffer_load_dwordx4 %s, v%d, %s, s40 offen offset:%d sc1" % (vr(BF + (T * 8 + i) * 4, 4), vl, sr(S_WS, 4), (i % 4) * 1024))
    for T in range(2):
        for i in range(8):
            k("s_waitcnt vmcnt(%d)" % (15 - (T * 8 + i)))
            for N in range(4):
                d = vr(acc + (N * 2 + T) * 4, 4)
                k("v_mfma_f32_16x16x32_bf16 %s, %s, %s, %s" % (d, ur(WB + (N * 8 + i) * 4, 4), vr(BF + (T * 8 + i) * 4, 4), "0" if i == 0 else d))
    k.lin(t0, lambda t: (t & 63) * 16 + (t >> 6) * 8192, t1)
    for x in range(8): k("ds_write_b128 v%d, %s offset:%d" % (t0, vr(acc + 4 * x, 4), x * 1024))
    k("s_waitcnt lgkmcnt(0)"); k("s_barrier")
    for w in range(4):
        for T in range(2): k("ds_read_b128 %s, v%d offset:%d" % (vr(BF + (w * 2 + T) * 4, 4), vrd, w * 8192 + T * 1024))
    k("s_waitcnt lgkmcnt(0)")
    for T in range(2):
        for r in range(4):
            a0 = BF + T * 4 + r
            k("v_add_f32 v%d, v%d, v%d" % (a0, a0, a0 + 8)); k("v_add_f32 v%d, v%d, v%d" % (a0 + 16, a0 + 16, a0 + 24))
            k("v_add_f32 v%d, v%d, v%d" % (a0, a0, a0 + 16))
    k("s_lshl_b32 s40, s%d, 2" % sseg); k("s_add_u32 s40, s40, s%d" % sks); k("s_mul_i32 s40, s40, %d" % (32 * 2560))
    k("s_lshl_b32 s41, s%d, 8" % sns); k("s_add_u32 s40, s40, s41"); k("s_add_u32 s40, s40, %d" % WS_OPP)
    k("buffer_store_dwordx4 %s, v%d, %s, s40 offen sc1" % (vr(BF, 4), vst, sr(S_WS, 4)))
    k("s_add_u32 s40, s40, %d" % (16 * 2560))
    k("buffer_store_dwordx4 %s, v%d, %s, s40 offen sc1" % (vr(BF + 4, 4), vst, sr(S_WS, 4)))
    k("s_waitcnt vmcnt(0)"); k("s_barrier")
    sk = k.newlabel("pub")
    k("s_cmp_lg_u32 s%d, 0" % S_WAVE); k("s_cbranch_scc1 %s" % sk)
    k("s_mul_i32 s40, s%d, 10" % sks); k("s_add_u32 s40, s40, s%d" % sns); k("s_lshl_b32 s40, s40, 7")
    k("s_add_u32 s40, s40, %d" % (WS_FLAGS + F_OP * FL_STRIDE))
    k.publish_word(40, "s43", t0, t1)
    k.label(sk)
    k("s_add_u32 s%d, s%d, 1" % (sseg, sseg)); k("s_cmp_lt_u32 s%d, 64" % sseg); k("s_cbranch_scc1 OP_loop")

def wave_sum(k, r, t):
    for rot in (1, 2, 4, 8):
        k("v_add_f32_dpp v%d, v%d, v%d row_ror:%d row_mask:0xf bank_mask:0xf" % (r, r, r, rot))
    k.xsum16_32([r], t)

def ln2_role(k, scu):
    GA, SB, CB = 32, 44, 56
    P, XR, X1 = 72, 120, 128
    vcol, vcol2, vx, vh2, t0, t1, t2, vflag, vmask = 8, 9, 10, 11, 12, 13, 14, 15, 16
    sseg, srow = S_P, S_P + 1
    k.srd(S_R0, "x")
    k("s_lshl_b32 s%d, s%d, 2" % (srow, scu)); k("s_add_u32 s%d, s%d, s%d" % (srow, srow, S_WAVE))
    k.lin(vcol, lambda t: (t & 63) * 16, t0)
    k("v_and_b32 v%d, 32, v0" % t0); k("v_cmp_eq_u32 vcc, 0, v%d" % t0)
    k("v_mov_b32 v%d, 0x7ff00000" % t1); k("v_cndmask_b32 v%d, v%d, v%d, vcc" % (vcol2, t1, vcol))
    k("v_mov_b32 v%d, 0" % t1); k("v_mov_b32 v%d, 1.0" % t2); k("v_cndmask_b32 v%d, v%d, v%d, vcc" % (vmask, t1, t2))
    k.flag_addr(vflag, F_OP, 40, t0)
    k.poll_dbg(DBG_MODA, N_MODA, t0, t1)
    k.poll_dbg(DBG_MODB, N_MODB, t0, t1)
    for name, row in ((GA, 2), (SB, 3), (CB, 4)):
        k("s_mov_b32 s40, %d" % (WS_MOD + row * 2560))
        for g in range(3):
            k("buffer_load_dwordx4 %s, v%d, %s, s40 offen offset:%d sc1" % (vr(name + 4 * g, 4), vcol2 if g == 2 else vcol, sr(S_WS, 4), g * 1024))
    k.srd_wait()
    k("s_waitcnt vmcnt(0)")
    for i in range(12): k("v_add_f32 v%d, 1.0, v%d" % (CB + i, CB + i))
    k("s_mov_b32 s%d, 0" % sseg)
    k.label("LN2_loop")
    k("s_add_u32 s43, s%d, 1" % sseg)
    k("s_lshl_b32 s40, s%d, 5" % sseg); k("s_add_u32 s40, s40, s%d" % srow)
    k("s_mul_i32 s41, s40, 1280")
    k("v_lshrrev_b32 v%d, 1, v%d" % (vx, vcol)); k("v_lshrrev_b32 v%d, 1, v%d" % (vh2, vcol2))
    k("v_and_b32 v%d, 32, v0" % t0); k("v_cmp_eq_u32 vcc, 0, v%d" % t0); k("v_cndmask_b32 v%d, v%d, v%d, vcc" % (vh2, vcol2, vh2))
    for g in range(3):
        k("buffer_load_dwordx2 %s, v%d, %s, s41 offen offset:%d" % (vr(XR + 2 * g, 2), vh2 if g == 2 else vx, sr(S_R0, 4), g * 512))
    k.poll_ge(S_WS, vflag, t1, "s43", sleep=2)
    for p in range(4):
        k("s_lshl_b32 s42, s%d, 2" % sseg); k("s_add_u32 s42, s42, %d" % p); k("s_lshl_b32 s42, s42, 5"); k("s_add_u32 s42, s42, s%d" % srow)
        k("s_mul_i32 s42, s42, 2560"); k("s_add_u32 s42, s42, %d" % WS_OPP)
        for g in range(3):
            k("buffer_load_dwordx4 %s, v%d, %s, s42 offen offset:%d sc1" % (vr(P + (p * 3 + g) * 4, 4), vcol2 if g == 2 else vcol, sr(S_WS, 4), g * 1024))
    k("s_waitcnt vmcnt(0)")
    for i in range(12):
        k("v_add_f32 v%d, v%d, v%d" % (P + i, P + i, P + 12 + i)); k("v_add_f32 v%d, v%d, v%d" % (P + 24 + i, P + 24 + i, P + 36 + i))
        k("v_add_f32 v%d, v%d, v%d" % (P + i, P + i, P + 24 + i))
    for i in range(6):
        k("v_lshlrev_b32 v%d, 16, v%d" % (X1 + 2 * i, XR + i)); k("v_and_b32 v%d, 0xffff0000, v%d" % (X1 + 2 * i + 1, XR + i))
    for i in range(12): k("v_fmac_f32 v%d, v%d, v%d" % (X1 + i, GA + i, P + i))
    k("s_mul_i32 s42, s40, 2560"); k("s_add_u32 s42, s42, %d" % WS_X1)
    for g in range(3):
        k("buffer_store_dwordx4 %s, v%d, %s, s42 offen offset:%d sc1" % (vr(X1 + 4 * g, 4), vcol2 if g == 2 else vcol, sr(S_WS, 4), g * 1024))
    k("v_add_f32 v%d, v%d, v%d" % (t0, X1, X1 + 1))
    for i in range(2, 12): k("v_add_f32 v%d, v%d, v%d" % (t0, t0, X1 + i))
    wave_sum(k, t0, t1)
    k("v_mul_f32 v%d, 0x%08x, v%d" % (t0, f32bits(1.0 / 640), t0))
    for i in range(12): k("v_sub_f32 v%d, v%d, v%d" % (P + i, X1 + i, t0))
    for i in range(8, 12): k("v_mul_f32 v%d, v%d, v%d" % (P + i, P + i, vmask))
    k("v_mul_f32 v%d, v%d, v%d" % (t0, P, P))
    for i in range(1, 12): k("v_fmac_f32 v%d, v%d, v%d" % (t0, P + i, P + i))
    wave_sum(k, t0, t1)
    k("v_mov_b32 v%d, 0x%08x" % (t1, f32bits(1e-5)))
    k("v_fmac_f32 v%d, 0x%08x, v%d" % (t1, f32bits(1.0 / 640), t0))
    k("v_rsq_f32 v%d, v%d" % (t1, t1))
    for i in range(12):
        k("v_mul_f32 v%d, v%d, v%d" % (P + i, P + i, t1))
        k("v_fma_f32 v%d, v%d, v%d, v%d" % (P + i, P + i, CB + i, SB + i))
    for i in range(6): k("v_cvt_pk_bf16_f32 v%d, v%d, v%d" % (XR + i, P + 2 * i, P + 2 * i + 1))
    k("s_add_u32 s42, s41, %d" % WS_H2)
    for g in range(3):
        k("buffer_store_dwordx2 %s, v%d, %s, s42 offen offset:%d sc1" % (vr(XR + 2 * g, 2), vh2 if g == 2 else vx, sr(S_WS, 4), g * 512))
    k("s_waitcnt vmcnt(0)")
    k("s_lshl_b32 s40, s%d, 7" % srow); k("s_add_u32 s40, s40, %d" % (WS_FLAGS + F_LN2 * FL_STRIDE))
    k.publish_word(40, "s43", t0, t1)
    k("s_add_u32 s%d, s%d, 1" % (sseg, sseg)); k("s_cmp_lt_u32 s%d, 64" % sseg); k("s_cbranch_scc1 LN2_loop")

def g1_role(k, sidx):
    acc, AFr, BFr, BI = 32, 104, 176, 180
    vw, vh, rda, rdb, t0, t1, t2, vflag, vl = 8, 13, 14, 15, 16, 17, 18, 19, 20
    sseg, sdb, sfb = S_P, S_P + 1, S_P + 2
    LW, LH = 0, 18432
    k.srd(S_R0, "w1"); k.srd(S_R1, "b1")
    k("s_mul_i32 s%d, s%d, 43" % (sdb, sidx)); k("s_lshr_b32 s%d, s%d, 8" % (sdb, sdb))
    k("s_mul_i32 s40, s%d, 6" % sdb); k("s_sub_u32 s%d, s%d, s40" % (sfb, sidx))
    for j in range(5):
        k.lin(t0, lambda t: ((t >> 6) + 4 * j) * 64 + (t & 63), t1)
        k("s_mov_b32 s40, 1821"); k("v_mul_u32_u24 v%d, s40, v%d" % (t1, t0)); k("v_lshrrev_b32 v%d, 16, v%d" % (t1, t1))
        k("v_mul_u32_u24 v%d, 36, v%d" % (t2, t1)); k("v_sub_u32 v%d, v%d, v%d" % (t2, t0, t2))
        k("s_mov_b32 s40, 3456"); k("v_mul_u32_u24 v%d, s40, v%d" % (t1, t1)); k("v_lshl_add_u32 v%d, v%d, 4, v%d" % (vw + j, t2, t1))
    k.lin(vh, lambda t: (((t & 63) >> 3) + 8 * (t >> 6)) * 1280 + (t & 7) * 16, t0)
    k.lin(rda, lambda t: LW + (8 * ((t >> 4) & 3) + ((t >> 2) & 3)) * 576 + (t & 3) * 8, t0)
    k.lin(rdb, lambda t: LH + (8 * ((t >> 4) & 3) + ((t >> 2) & 3)) * 128 + (t & 3) * 8 + (t >> 6) * 32, t0)
    k.flag_addr(vflag, F_LN2, 32, t0)
    k.srd_wait()
    for i in range(72): k("v_mov_b32 v%d, 0" % (acc + i))
    k("s_mov_b32 s%d, 0" % sseg)
    k.label("G1_loop")
    k("s_add_u32 s43, s%d, 1" % sseg)
    k("s_barrier")
    k("s_mul_i32 s41, s%d, %d" % (sseg, 32 * 3456)); k("s_mul_i32 s40, s%d, 576" % sfb); k("s_add_u32 s41, s41, s40")
    for j in range(5):
        sk = k.newlabel("w1")
        if j == 4: k("s_cmp_ge_u32 s%d, 2" % S_WAVE); k("s_cbranch_scc1 %s" % sk)
        k("s_lshl_b32 s42, s%d, 10" % S_WAVE); k("s_add_u32 s42, s42, %d" % (LW + j * 4096)); k("s_mov_b32 m0, s42")
        k("buffer_load_dwordx4 v%d, %s, s41 offen lds" % (vw + j, sr(S_R0, 4)))
        k.label(sk)
    k.poll_ge(S_WS, vflag, t1, "s43", sleep=2)
    k("s_mul_i32 s41, s%d, %d" % (sseg, 32 * 1280)); k("s_lshl_b32 s40, s%d, 7" % sdb); k("s_add_u32 s41, s41, s40"); k("s_add_u32 s41, s41, %d" % WS_H2)
    k("s_lshl_b32 s42, s%d, 10" % S_WAVE); k("s_add_u32 s42, s42, %d" % LH); k("s_mov_b32 m0, s42")
    k("buffer_load_dwordx4 v%d, %s, s41 offen sc1 lds" % (vh, sr(S_WS, 4)))
    k("s_waitcnt vmcnt(0)"); k("s_barrier")
    for t in range(2): k("ds_read_b64_tr_b16 %s, v%d offset:%d" % (vr(BFr + 2 * t, 2), rdb, t * 4 * 128))
    for Fi in range(18):
        for t in range(2): k("ds_read_b64_tr_b16 %s, v%d offset:%d" % (vr(AFr + 4 * Fi + 2 * t, 2), rda, Fi * 32 + t * 4 * 576))
        if Fi == 5 or Fi == 11: k("s_waitcnt lgkmcnt(0)")
    k("s_waitcnt lgkmcnt(0)")
    for Fi in range(18):
        k("v_mfma_f32_16x16x32_bf16 %s, %s, %s, %s" % (vr(acc + 4 * Fi, 4), vr(AFr + 4 * Fi, 4), vr(BFr, 4), vr(acc + 4 * Fi, 4)))
    k("s_add_u32 s%d, s%d, 1" % (sseg, sseg)); k("s_cmp_lt_u32 s%d, 64" % sseg); k("s_cbranch_scc1 G1_loop")
    k.lin(t0, lambda t: ((t >> 4) & 3) * 8, t1)
    k("s_mul_i32 s40, s%d, 576" % sfb)
    for Fi in range(18): k("buffer_load_dwordx2 %s, v%d, %s, s40 offen offset:%d" % (vr(AFr + 2 * Fi, 2), t0, sr(S_R1, 4), Fi * 32))
    k("s_waitcnt vmcnt(0)")
    c1 = -2.0 * math.sqrt(2.0 / math.pi) * math.log2(math.e); c2 = c1 * 0.044715
    k("s_mov_b32 s40, 0x%08x" % f32bits(c2)); k("v_mov_b32 v%d, 0x%08x" % (BI, f32bits(c1)))
    for Fi in range(18):
        for r in range(4):
            x = acc + 4 * Fi + r; b = AFr + 2 * Fi + (r >> 1)
            if r & 1: k("v_and_b32 v%d, 0xffff0000, v%d" % (t1, b))
            else: k("v_lshlrev_b32 v%d, 16, v%d" % (t1, b))
            k("v_add_f32 v%d, v%d, v%d" % (x, x, t1))
            k("v_mul_f32 v%d, v%d, v%d" % (t1, x, x))
            k("v_fma_f32 v%d, v%d, s40, v%d" % (t1, t1, BI))
            k("v_mul_f32 v%d, v%d, v%d" % (t1, t1, x))
            k("v_exp_f32 v%d, v%d" % (t1, t1))
            k("v_add_f32 v%d, 1.0, v%d" % (t1, t1))
            k("v_rcp_f32 v%d, v%d" % (t1, t1))
            k("v_mul_f32 v%d, v%d, v%d" % (x, x, t1))
    k.lin(vl, lambda t: (t & 63) * 16 + (t >> 6) * 54 * 1024, t0)
    k("s_lshl_b32 s40, s%d, 2" % sdb); k("s_mul_i32 s40, s40, %d" % (54 * 1024)); k("s_mul_i32 s41, s%d, %d" % (sfb, 9 * 1024))
    k("s_add_u32 s40, s40, s41"); k("s_add_u32 s40, s40, %d" % WS_U)
    for m in range(9):
        g = AFr + 4 * m
        for d in range(4): k("v_cvt_pk_bf16_f32 v%d, v%d, v%d" % (g + d, acc + 8 * m + 2 * d, acc + 8 * m + 2 * d + 1))
        k("buffer_store_dwordx4 %s, v%d, %s, s40 offen sc1" % (vr(g, 4), vl, sr(S_WS, 4)))
        k("s_add_u32 s40, s40, 1024")
    k("s_waitcnt vmcnt(0)"); k("s_barrier")
    sk = k.newlabel("pub")
    k("s_cmp_lg_u32 s%d, 0" % S_WAVE); k("s_cbranch_scc1 %s" % sk)
    k("s_lshl_b32 s40, s%d, 7" % sidx); k("s_add_u32 s40, s40, %d" % (WS_FLAGS + F_G1 * FL_STRIDE))
    k.publish_word(40, "1", t0, t1)
    k.label(sk)

G2_KS = [(0, 14), (14, 14), (28, 13), (41, 13)]
def g2(k):
    WB = 256
    acc, UF = 32, 112
    va, ra, t0, t1, vl, vflag = 8, 9, 13, 14, 15, 16
    ssb, sdb, sk0, snk = S_P, S_P + 1, S_P + 2, S_P + 3
    k("s_lshr_b32 s%d, s%d, 1" % (ssb, S_XCC)); k("s_lshl_b32 s%d, s%d, 3" % (ssb, ssb)); k("s_lshr_b32 s40, s%d, 2" % S_TK); k("s_add_u32 s%d, s%d, s40" % (ssb, ssb))
    k("s_and_b32 s%d, s%d, 1" % (sdb, S_XCC)); k("s_lshl_b32 s%d, s%d, 2" % (sdb, sdb)); k("s_and_b32 s40, s%d, 3" % S_TK); k("s_add_u32 s%d, s%d, s40" % (sdb, sdb))
    k.srd(S_R0, "w2"); k.srd(S_R1, "b2"); k.srd(S_R2, "out")
    k("s_barrier")
    rows128_setup(k, 4096, va, ra, t0, 32768)
    k("s_mul_i32 s%d, s%d, 14" % (sk0, S_WAVE)); k("s_cmp_eq_u32 s%d, 3" % S_WAVE); k("s_cselect_b32 s40, 1, 0"); k("s_sub_u32 s%d, s%d, s40" % (sk0, sk0))
    k("s_mul_i32 s41, s%d, %d" % (sk0, 32 * 4096)); k("s_lshl_b32 s40, s%d, 7" % ssb); k("s_add_u32 s41, s41, s40")
    k.srd_wait()
    for rnd in range(2):
        rows128_issue(k, S_R0, 41, 4096, 7, va, 32768)
        k("s_waitcnt vmcnt(0)")
        rows128_read(k, 7, ra, lambda N, i: WB + (N * 14 + rnd * 7 + i) * 4)
        k("s_waitcnt lgkmcnt(0)")
    k.flag_addr(vflag, F_G1, 60, t0)
    k.poll_dbg(DBG_MODA, N_MODA, t0, t1)
    k.poll_ge(S_WS, vflag, t1, "1", sleep=8)
    k.lin(vl, lambda t: (t & 63) * 16, t0)
    k("s_mul_i32 s40, s%d, %d" % (sdb, 5 * 54 * 1024)); k("s_lshl_b32 s41, s%d, 10" % sk0); k("s_add_u32 s40, s40, s41"); k("s_add_u32 s40, s40, %d" % WS_U)
    for Dt in range(5): k("s_add_u32 s%d, s40, %d" % (S_P + 4 + Dt, Dt * 54 * 1024))
    def uload(i):
        for Dt in range(5):
            k("buffer_load_dwordx4 %s, v%d, %s, s%d offen offset:%d sc1" % (vr(UF + (i & 1) * 20 + 4 * Dt, 4), vl, sr(S_WS, 4), S_P + 4 + Dt, (i % 4) * 1024))
    def bump():
        for Dt in range(5): k("s_add_u32 s%d, s%d, 4096" % (S_P + 4 + Dt, S_P + 4 + Dt))
    uload(0)
    last = k.newlabel("g2last")
    for i in range(14):
        if i == 13:
            k("s_cmp_ge_u32 s%d, 2" % S_WAVE); k("s_cbranch_scc1 %s" % last)
        nxt = i + 1 < 14
        if nxt:
            if (i + 1) % 4 == 0: bump()
            uload(i + 1)
            k("s_waitcnt vmcnt(5)")
        else:
            k("s_waitcnt vmcnt(0)")
        for Dt in range(5):
            for N in range(4):
                d = vr(acc + (Dt * 4 + N) * 4, 4)
                k("v_mfma_f32_16x16x32_bf16 %s, %s, %s, %s" % (d, vr(UF + (i & 1) * 20 + 4 * Dt, 4), ur(WB + (N * 14 + i) * 4, 4), "0" if i == 0 else d))
    k.label(last)
    k("s_waitcnt vmcnt(0)")
    k("s_barrier")
    k.lin(t0, lambda t: (t & 63) * 16 + (t >> 6) * 20480, t1)
    for x in range(20): k("ds_write_b128 v%d, %s offset:%d" % (t0, vr(acc + 4 * x, 4), x * 1024))
    k("s_waitcnt lgkmcnt(0)"); k("s_barrier")
    R = 112
    k.lin(t0, lambda t: (t & 63) * 16 + (t >> 6) * 1024, t1)
    for w in range(4):
        k("v_add_u32 v%d, %d, v%d" % (t1, w * 20480, t0))
        for Dt in range(5): k("ds_read_b128 %s, v%d offset:%d" % (vr(R + (w * 5 + Dt) * 4, 4), t1, Dt * 4096))
    X, GB, B2 = 32, 52, 72
    k.lin(t0, lambda t: ((t & 15) + 16 * (t >> 6)) * 2560 + ((t >> 4) & 3) * 16, t1)
    k("s_mul_i32 s40, s%d, %d" % (ssb, 64 * 2560)); k("s_mul_i32 s41, s%d, 320" % sdb); k("s_add_u32 s40, s40, s41"); k("s_add_u32 s40, s40, %d" % WS_X1)
    for Dt in range(5): k("buffer_load_dwordx4 %s, v%d, %s, s40 offen offset:%d sc1" % (vr(X + 4 * Dt, 4), t0, sr(S_WS, 4), Dt * 64))
    k.lin(t0, lambda t: ((t >> 4) & 3) * 16, t1)
    k("s_mul_i32 s40, s%d, 320" % sdb); k("s_add_u32 s40, s40, %d" % (WS_MOD + 5 * 2560))
    for Dt in range(5): k("buffer_load_dwordx4 %s, v%d, %s, s40 offen offset:%d sc1" % (vr(GB + 4 * Dt, 4), t0, sr(S_WS, 4), Dt * 64))
    k.lin(t0, lambda t: ((t & 15) + 16 * (t >> 6)) * 2, t1)
    k("s_lshl_b32 s40, s%d, 7" % ssb)
    k("buffer_load_ushort v%d, v%d, %s, s40 offen" % (B2, t0, sr(S_R1, 4)))
    k("s_waitcnt vmcnt(0) lgkmcnt(0)")
    k("v_lshlrev_b32 v%d, 16, v%d" % (B2, B2))
    for i in range(20):
        k("v_add_f32 v%d, v%d, v%d" % (R + i, R + i, R + 20 + i)); k("v_add_f32 v%d, v%d, v%d" % (R + 40 + i, R + 40 + i, R + 60 + i))
        k("v_add_f32 v%d, v%d, v%d" % (R + i, R + i, R + 40 + i)); k("v_add_f32 v%d, v%d, v%d" % (R + i, R + i, B2))
        k("v_fmac_f32 v%d, v%d, v%d" % (X + i, GB + i, R + i))
    k.lin(t0, lambda t: ((t & 15) + 16 * (t >> 6)) * 1280 + ((t >> 4) & 3) * 8, t1)
    k("s_mul_i32 s40, s%d, %d" % (ssb, 64 * 1280)); k("s_mul_i32 s41, s%d, 160" % sdb); k("s_add_u32 s40, s40, s41")
    for Dt in range(5):
        k("v_cvt_pk_bf16_f32 v%d, v%d, v%d" % (R + 2 * Dt, X + 4 * Dt, X + 4 * Dt + 1))
        k("v_cvt_pk_bf16_f32 v%d, v%d, v%d" % (R + 2 * Dt + 1, X + 4 * Dt + 2, X + 4 * Dt + 3))
        k("buffer_store_dwordx2 %s, v%d, %s, s40 offen offset:%d" % (vr(R + 2 * Dt, 2), t0, sr(S_R2, 4), Dt * 32))
    k("s_waitcnt vmcnt(0)")
```

```python
import sys, os
sys.path.insert(0, os.path.dirname(os.path.abspath(__file__)))
from common import *
import pro, proj, attn, tail
NAME = "adaLN_cond__memory_aug_recurrent_mem_tr__mixer_token_mlp__prompt"

HEADER = open("cdna_kernels/%s.s.ref" % NAME).read().split("; Override launch geometry")[0]

def build(stage=99):
    k = G()
    pro.prologue(k)
    k("s_cmp_lt_u32 s%d, 2" % S_XCC); k("s_cbranch_scc1 L_chain")
    k("s_cmp_lt_u32 s%d, 4" % S_XCC); k("s_cbranch_scc1 L_kv")
    k("s_sub_u32 s%d, s%d, 4" % (S_P + 8, S_XCC))
    k("s_lshl_b32 s%d, s%d, 5" % (S_P + 8, S_P + 8))
    k("s_add_u32 s%d, s%d, s%d" % (S_P + 8, S_P + 8, S_TK))
    pro.ln1(k, S_P + 8)
    k("s_cmp_ge_u32 s%d, %d" % (S_P + 8, N_MODB)); k("s_cbranch_scc1 L_modb_done")
    k("s_add_u32 s%d, s%d, %d" % (S_P + 9, S_P + 8, N_MODA))
    tok = pro.mod_issue(k, S_P + 9, 100)
    pro.mod_finish(k, S_P + 9, 100, tok, DBG_MODB)
    k.label("L_modb_done")
    if stage >= 3:
        k("s_cmp_eq_u32 s%d, 4" % S_XCC); k("s_cbranch_scc1 L_q")
        k("s_cmp_eq_u32 s%d, 5" % S_XCC); k("s_cbranch_scc1 L_op5")
        k("s_cmp_eq_u32 s%d, 6" % S_XCC); k("s_cbranch_scc0 L_g2")
        k("s_cmp_lt_u32 s%d, 10" % S_TK); k("s_cbranch_scc1 L_op6")
        k("s_cmp_ge_u32 s%d, 18" % S_TK); k("s_cbranch_scc1 L_g2")
        k("s_sub_u32 s%d, s%d, 10" % (S_P + 10, S_TK))
        if stage >= 4: tail.ln2_role(k, S_P + 10)
        k("s_branch L_g2")
        k.label("L_op6")
        k("s_mov_b32 s%d, 3" % (S_P + 10)); k("s_mov_b32 s%d, s%d" % (S_P + 11, S_TK))
        k("s_branch L_op")
        k.label("L_op5")
        k("s_cmp_ge_u32 s%d, 30" % S_TK); k("s_cbranch_scc1 L_g2")
        k("s_mul_i32 s%d, s%d, 26" % (S_P + 10, S_TK)); k("s_lshr_b32 s%d, s%d, 8" % (S_P + 10, S_P + 10))
        k("s_mul_i32 s40, s%d, 10" % (S_P + 10)); k("s_sub_u32 s%d, s%d, s40" % (S_P + 11, S_TK))
        k.label("L_op")
        if stage >= 4: tail.op_role(k, S_P + 10, S_P + 11)
        k("s_branch L_g2")
        k.label("L_q")
        k.srd(S_R2, "wq"); k.srd_wait()
        proj.load_w128(k, S_R2, S_TK, 256, 8)
        k.poll_dbg(DBG_MODA, N_MODA, 8, 9)
        attn.qattn_role(k)
        k("s_branch L_g2")
    else:
        k("s_branch L_end")
    k.label("L_kv")
    k("s_cmp_lg_u32 s%d, 2" % S_XCC); k("s_cbranch_scc1 L_nozero")
    k("s_cmp_ge_u32 s%d, 16" % S_TK); k("s_cbranch_scc1 L_nozero")
    pro.zero_flags(k, S_TK, 8)
    k.label("L_nozero")
    k("s_cmp_ge_u32 s%d, 20" % S_TK); k("s_cbranch_scc1 L_nomoda")
    k("s_sub_u32 s%d, s%d, 2" % (S_P + 9, S_XCC))
    k("s_mul_i32 s%d, s%d, 20" % (S_P + 9, S_P + 9))
    k("s_add_u32 s%d, s%d, s%d" % (S_P + 9, S_P + 9, S_TK))
    tok = pro.mod_issue(k, S_P + 9, 100)
    pro.mod_finish(k, S_P + 9, 100, tok, DBG_MODA)
    k.label("L_nomoda")
    k("s_cmp_eq_u32 s%d, 3" % S_XCC); k("s_cbranch_scc1 L_v")
    k.srd(S_R2, "wk"); k.srd_wait()
    proj.load_w128(k, S_R2, S_TK, 256, 8)
    k.poll_dbg(DBG_MODA, N_MODA, 8, 9)
    proj.kv_role(k, True, "K")
    k("s_branch L_g1")
    k.label("L_v")
    k.srd(S_R2, "wv"); k.srd_wait()
    proj.load_w128(k, S_R2, S_TK, 256, 8)
    k.poll_dbg(DBG_MODA, N_MODA, 8, 9)
    proj.kv_role(k, False, "V")
    k.label("L_g1")
    if stage >= 5:
        k("s_sub_u32 s%d, s%d, 2" % (S_P + 10, S_XCC)); k("s_lshl_b32 s%d, s%d, 5" % (S_P + 10, S_P + 10)); k("s_add_u32 s%d, s%d, s%d" % (S_P + 10, S_P + 10, S_TK))
        k("s_cmp_ge_u32 s%d, 60" % (S_P + 10)); k("s_cbranch_scc1 L_g2")
        tail.g1_role(k, S_P + 10)
    k("s_branch L_g2")
    k.label("L_chain")
    if stage >= 2:
        import chain
        chain.chain_role(k)
    k.label("L_g2")
    if stage >= 6: tail.g2(k)
    k.label("L_end")
    k("s_endpgm")
    body = k.finalize()
    kn = NAME + "_kernel"
    txt = HEADER
    txt += "; @launch grid=(256,1,1) block=(256,1,1) lds=163840\n"
    txt += '.amdgcn_target "amdgcn-amd-amdhsa--gfx950"\n.text\n.globl %s\n.p2align 8\n.type %s,@function\n%s:\n' % (kn, kn, kn)
    txt += body
    txt += '.section .rodata,"a"\n.p2align 6\n.amdhsa_kernel %s\n' % kn
    txt += "  .amdhsa_next_free_vgpr 512\n  .amdhsa_next_free_sgpr 102\n  .amdhsa_accum_offset 256\n  .amdhsa_group_segment_fixed_size 0\n"
    txt += "  .amdhsa_kernarg_size 136\n  .amdhsa_user_sgpr_count 2\n  .amdhsa_user_sgpr_kernarg_segment_ptr 1\n  .amdhsa_system_sgpr_workgroup_id_x 1\n"
    txt += "  .amdhsa_float_denorm_mode_32 3\n"
    txt += ".end_amdhsa_kernel\n"
    return txt

if __name__ == "__main__":
    stage = int(sys.argv[1]) if len(sys.argv) > 1 else 99
    out = sys.argv[2] if len(sys.argv) > 2 else "k.s"
    t = build(stage)
    open(out, "w").write(t)
    print("wrote", out, len(t), "bytes,", t.count("\n"), "lines")
```
